```python
import torch

def _softmax(x, axis=-1):
    return torch.softmax(x, dim=axis)

def _gelu(x):
    return torch.nn.functional.gelu(x, approximate='tanh')

def _silu(x):
    return torch.nn.functional.silu(x)

def _sigmoid(x):
    return torch.sigmoid(x)

def _layernorm(x, axis=-1, eps=1e-05):
    m = x.mean(dim=axis, keepdim=True)
    v = x.var(dim=axis, keepdim=True, unbiased=False)
    return (x - m) / torch.sqrt(v + eps)

def _scatter_add(tgt, idx, src, axis=0):
    return tgt.clone().index_add_(axis, idx, src)

def _segment_sum(src, seg, n):
    out = torch.zeros((n,) + src.shape[1:], dtype=src.dtype)
    return out.index_add_(0, seg, src)

def _pad(x, pw):
    flat = tuple((v for pair in reversed(pw) for v in pair))
    return torch.nn.functional.pad(x, flat)
kernel_name = 'adaLN_cond__mha_block_cached__dense_activation_silu__prompt'

def setup_inputs():

    _w = lambda a: (lambda t: t.to(torch.bfloat16) if t.is_floating_point() else t)(torch.as_tensor(a))

    def _A_setup():
        B, Sq, D = (1, 2048, 576)
        H, Sk, Dh = (32, 2048, 128)
        return {'x': _w((lambda *s: torch.randn(*s, dtype=torch.bfloat16) * 0.1)(B, Sq, D)), 'k_cache': _w((lambda *s: torch.randn(*s, dtype=torch.bfloat16) * 0.8)(B, H, Sk, Dh)), 'v_cache': _w((lambda *s: torch.randn(*s, dtype=torch.bfloat16) * 3.2)(B, H, Sk, Dh)), 'wq': _w((lambda *s: torch.randn(*s, dtype=torch.bfloat16) * 0.8)(D, H * Dh) * D ** (-0.5)), 'wo': _w((lambda *s: torch.randn(*s, dtype=torch.bfloat16) * 3.2)(H * Dh, D) * (H * Dh) ** (-0.5))}
    _A_in = _A_setup()

    def _B_setup():
        B, S, D, F = (1, 2048, 576, 4608)
        return {'x': _w((lambda *s: torch.randn(*s, dtype=torch.bfloat16) * 0.1)(B, S, D)), 'w1': _w((lambda *s: torch.randn(*s, dtype=torch.bfloat16) * 3.2)(D, F) * D ** (-0.5)), 'w2': _w((lambda *s: torch.randn(*s, dtype=torch.bfloat16) * 3.2)(F, D) * F ** (-0.5))}
    _B_in = _B_setup()
    return {'A_x': _A_in['x'], 'A_k_cache': _A_in['k_cache'], 'A_v_cache': _A_in['v_cache'], 'A_wq': _A_in['wq'], 'A_wo': _A_in['wo'], 'B_x': _B_in['x'], 'B_w1': _B_in['w1'], 'B_w2': _B_in['w2'], 'c': _w((lambda *s: torch.randn(*s, dtype=torch.bfloat16) * 0.2)(1, 576) * 8.0), 'w_mod': _w((lambda *s: torch.randn(*s, dtype=torch.bfloat16) * 0.2)(576, 6 * 576) * 576 ** (-0.5) * 8.0)}

def reference(A_x, A_k_cache, A_v_cache, A_wq, A_wo, B_x, B_w1, B_w2, c, w_mod):

    def _A_ref(x, k_cache, v_cache, wq, wo):
        B, Sq, D = x.shape
        H, Dh = (32, 128)
        q = (lambda x, *d: x.permute(*d))((x @ wq).reshape(B, Sq, H, Dh), 0, 2, 1, 3)
        scores = torch.einsum('bhqd,bhkd->bhqk', q, k_cache) * Dh ** (-0.5)
        p = _softmax(scores, axis=-1)
        o = torch.einsum('bhqk,bhkd->bhqd', p, v_cache)
        return (lambda x, *d: x.permute(*d))(o, 0, 2, 1, 3).reshape(B, Sq, H * Dh) @ wo

    def _B_ref(x, w1, w2):
        h = torch.einsum('bsd,df->bsf', x, w1)
        h = _silu(h)
        out = torch.einsum('bsf,fd->bsd', h, w2)
        return out
    x = A_x
    mod = (_silu(c) @ w_mod).reshape(c.shape[0], 6, 1, -1)
    sa, ca, ga, sb, cb, gb = (mod[:, 0].clone(), mod[:, 1].clone(), mod[:, 2].clone(), mod[:, 3].clone(), mod[:, 4].clone(), mod[:, 5].clone())
    h = _layernorm(x, axis=-1) * (1 + ca) + sa
    x = x + ga * _A_ref(h, A_k_cache, A_v_cache, A_wq, A_wo)
    h = _layernorm(x, axis=-1) * (1 + cb) + sb
    x = x + gb * _B_ref(h, B_w1, B_w2)
    return x
```

```python
from common import *

C_SCALE = 0x3e0293ee
THR_RAW = 0x427af233
LEAD = 4
BAR_GAP = 17

A_O = 0
A_Q = 128
A_F = 192
V_KA = 8
V_VA = 16
V_KD = 20
V_VD = 24
V_M = 26
V_MC = 28
V_L = 30
V_AL = 32
V_MX = 34
V_T = 42
V_S = [128, 192]


def cost(ins):
    if ins.startswith("v_exp") or ins.startswith("v_rcp"):
        return 8
    if ins.startswith("buffer_load"):
        return 16
    if ins.startswith("s_"):
        return 2
    return 4


class Attn:
    def __init__(self, a):
        self.a = a
        self.pending = []
        self.stubs = []

    def S(self, buf, qb, kb):
        return V_S[buf] + (qb * 2 + kb) * 16

    def k_reads(self, tile, f):
        kb, ks = f >> 3, f & 7
        off = (tile % 4) * 16384 + kb * 8192
        return [(("K", f, 0), "ds_read_b128 a[%d:%d], v%d offset:%d" % (A_F + 4 * f, A_F + 4 * f + 3, V_KA + ks, off))]

    def v_reads(self, tile, f):
        kstep, db = f >> 2, f & 3
        out = []
        for e2 in range(2):
            off = (tile % 4) * 16384 + kstep * 4096 + e2 * 2048
            r = A_F + 4 * f + 2 * e2
            out.append((("V", f, e2), "ds_read_b64_tr_b16 a[%d:%d], v%d offset:%d" % (r, r + 1, V_VA + db, off)))
        return out

    def qk_mfmas(self, tile):
        buf = tile & 1
        out = []
        for f in range(16):
            kb, ks = f >> 3, f & 7
            for qb in range(2):
                s = self.S(buf, qb, kb)
                q = A_Q + (qb * 8 + ks) * 4
                c = "0" if ks == 0 else "v[%d:%d]" % (s, s + 15)
                out.append((("K", f, 0), "v_mfma_f32_32x32x16_bf16 v[%d:%d], a[%d:%d], a[%d:%d], %s" % (
                    s, s + 15, A_F + 4 * f, A_F + 4 * f + 3, q, q + 3, c)))
        return out

    def pv_mfmas(self, tile):
        buf = tile & 1
        out = []
        for f in range(16):
            kstep, db = f >> 2, f & 3
            for qb in range(2):
                p = self.S(buf, qb, kstep >> 1) + 8 * (kstep & 1)
                o = A_O + (qb * 4 + db) * 16
                out.append((("V", f, 1), "v_mfma_f32_32x32x16_bf16 a[%d:%d], a[%d:%d], v[%d:%d], a[%d:%d]" % (
                    o, o + 15, A_F + 4 * f, A_F + 4 * f + 3, p, p + 3, o, o + 15)))
        return out

    def max_stream(self, tile):
        buf = tile & 1
        out = []
        for kb in range(2):
            for step in range(8):
                for qb in range(2):
                    s = self.S(buf, qb, kb)
                    d = V_MX + 2 + qb * 2 + kb
                    if step == 0:
                        out.append("v_max3_f32 v%d, v%d, v%d, v%d" % (d, s, s + 1, s + 2))
                    elif step < 7:
                        out.append("v_max3_f32 v%d, v%d, v%d, v%d" % (d, d, s + 1 + 2 * step, s + 2 + 2 * step))
                    else:
                        out.append("v_max_f32 v%d, v%d, v%d" % (d, d, s + 15))
        for qb in range(2):
            out.append("v_max_f32 v%d, v%d, v%d" % (V_MX + qb, V_MX + 2 + qb * 2, V_MX + 3 + qb * 2))
        for qb in range(2):
            out.append("v_mov_b32 v%d, v%d" % (V_MX + 2 + qb, V_MX + qb))
        out.append("s_nop 1")
        for qb in range(2):
            out.append("v_permlane32_swap_b32 v%d, v%d" % (V_MX + qb, V_MX + 2 + qb))
        for qb in range(2):
            out.append("v_max_f32 v%d, v%d, v%d" % (V_MX + qb, V_MX + qb, V_MX + 2 + qb))
        return out

    def check_stream(self):
        lab = self.a.newlabel("stub")
        ret = self.a.newlabel("ret")
        self.stubs.append((lab, ret))
        return ["v_sub_f32 v%d, v%d, v%d" % (V_MX + 2, V_MX, V_M),
                "v_sub_f32 v%d, v%d, v%d" % (V_MX + 3, V_MX + 1, V_M + 1),
                "v_max_f32 v%d, v%d, v%d" % (V_MX + 2, V_MX + 2, V_MX + 3),
                "v_cmp_lt_f32 vcc, s29, v%d" % (V_MX + 2),
                "s_cbranch_vccnz %s" % lab,
                "@" + ret]

    def exp_stream(self, tile):
        buf = tile & 1
        elems = []
        for kb in range(2):
            for half in range(2):
                for qb in range(2):
                    for i in range(8):
                        elems.append((qb, self.S(buf, qb, kb) + 8 * half, i))
        out = []
        n = len(elems)
        for e in range(n + 2):
            if e < n:
                qb, b, i = elems[e]
                out.append("v_fma_f32 v%d, v%d, s28, -v%d" % (b + i, b + i, V_MC + qb))
            if 0 <= e - 1 < n:
                qb, b, i = elems[e - 1]
                out.append("v_exp_f32 v%d, v%d" % (b + i, b + i))
            if 0 <= e - 2 < n:
                qb, b, i = elems[e - 2]
                out.append("v_add_f32 v%d, v%d, v%d" % (V_L + qb, V_L + qb, b + i))
                if i & 1:
                    out.append("v_cvt_pk_bf16_f32 v%d, v%d, v%d" % (b + (i >> 1), b + i - 1, b + i))
        return out

    def dma_stream(self, t):
        out = []
        out.append(["s_add_u32 m0, s34, %d" % (((t + 5) % 4) * 16384), "s_nop 0",
                    "buffer_load_dwordx4 v%d, s[12:15], s30 offen lds" % V_KD])
        for n in range(1, 4):
            out.append(["buffer_load_dwordx4 v%d, s[12:15], s30 offen offset:%d lds" % (V_KD + n, n * 1024)])
        out.append(["s_add_u32 m0, s34, %d" % (65536 + ((t + 3) % 4) * 16384), "s_add_u32 s30, s30, 16384",
                    "buffer_load_dwordx4 v%d, s[16:19], s31 offen lds" % V_VD])
        for n in range(1, 4):
            out.append(["buffer_load_dwordx4 v%d, s[16:19], s31 offen offset:%d lds" % (V_VD, n * 1024)])
        out[-1].append("s_add_u32 s31, s31, 16384")
        return out

    def emit(self, ins):
        if ins.startswith("@"):
            self.a.L(ins[1:])
        else:
            self.a.I(ins)

    def emit_ds(self, tag_ins):
        tag, ins = tag_ins
        self.pending.append(tag)
        self.a.I(ins)

    def need(self, tag):
        if tag in self.pending:
            idx = self.pending.index(tag)
            cnt = len(self.pending) - 1 - idx
            assert cnt <= 15
            self.a.I("s_waitcnt lgkmcnt(%d)" % cnt)
            self.pending = self.pending[idx + 1:]

    def phase(self, mfmas, own_reads, next_reads, valu, fixed):
        NG = 32
        ds_at = {g: [] for g in range(NG)}
        if own_reads is not None:
            for f in range(LEAD, 16):
                rs = own_reads(f)
                for j, r in enumerate(rs):
                    ds_at[2 * (f - LEAD) + j].append(r)
        if next_reads is not None:
            for f in range(LEAD):
                rs = next_reads(f)
                for j, r in enumerate(rs):
                    ds_at[NG - 2 * LEAD + 2 * f + j].append(r)
        fixed_cost = [sum(4 for _ in ds_at[g]) + sum(cost(x) for grp in fixed.get(g, []) for x in grp) for g in range(NG)]
        total = sum(cost(x) for x in valu if not x.startswith("@")) + sum(fixed_cost)
        per = total / NG
        valu = list(valu)
        acc = 0.0
        for g in range(NG):
            if mfmas:
                tag, ins = mfmas[g]
                self.need(tag)
                self.a.I(ins)
            for r in ds_at[g]:
                self.emit_ds(r)
            for grp in fixed.get(g, []):
                for x in grp:
                    self.emit(x)
            acc += fixed_cost[g]
            target = per * (g + 1)
            while valu and (acc + cost(valu[0]) / 2 <= target or g == NG - 1 or valu[0].startswith("@")):
                x = valu.pop(0)
                if not x.startswith("@"):
                    acc += cost(x)
                self.emit(x)
        assert not valu


def split_stream(full, frac):
    tot = sum(cost(x) for x in full if not x.startswith("@"))
    acc = 0
    for i, x in enumerate(full):
        if acc >= tot * frac:
            return full[:i], full[i:]
        if not x.startswith("@"):
            acc += cost(x)
    return full, []


def gen_attn(a, name="attn_kernel"):
    kernel_begin(a, name)
    A = Attn(a)
    end = a.newlabel("at_end")
    a.I("s_cmp_ge_u32 s2, 256")
    a.I("s_cbranch_scc1 %s" % end)
    a.I("s_load_dwordx2 s[4:5], s[0:1], %d" % KA_K)
    a.I("s_load_dwordx2 s[6:7], s[0:1], %d" % KA_V)
    a.I("s_load_dwordx2 s[8:9], s[0:1], %d" % KA_WS)
    a.I("v_and_b32 v1, 63, v0")
    a.I("v_lshrrev_b32 v2, 6, v0")
    a.I("s_and_b32 s35, s2, 7")
    a.I("s_lshr_b32 s36, s2, 3")
    a.I("s_lshl_b32 s35, s35, 2")
    a.I("s_lshr_b32 s37, s36, 3")
    a.I("s_add_u32 s35, s35, s37")
    a.I("s_and_b32 s36, s36, 7")
    a.I("v_readfirstlane_b32 s37, v2")
    a.I("s_lshl_b32 s38, s35, 19")
    a.I("s_waitcnt lgkmcnt(0)")
    srd_s(a, 12, 4, 38, 524288)
    srd_s(a, 16, 6, 38, 524288)
    srd(a, 20, 8, WS_Q, 2048 * 8192)
    srd(a, 24, 8, WS_O, 2048 * 8192)
    a.I("s_mov_b32 s28, 0x%x" % C_SCALE)
    a.I("s_mov_b32 s29, 0x%x" % THR_RAW)
    a.I("s_mov_b32 s33, 0")
    a.I("s_lshl_b32 s34, s37, 12")
    a.I("v_lshrrev_b32 v3, 4, v1")
    a.I("v_and_b32 v4, 15, v1")
    a.I("s_lshl_b32 s39, s37, 4")
    a.I("v_add_u32 v5, s39, v3")
    a.I("v_lshlrev_b32 v5, 8, v5")
    for n in range(4):
        a.I("v_add_u32 v6, %d, v3" % (4 * n))
        a.I("v_xor_b32 v6, v6, v4")
        a.I("v_lshlrev_b32 v6, 4, v6")
        a.I("v_add_u32 v%d, v5, v6" % (V_KD + n))
    a.I("v_lshlrev_b32 v6, 2, v3")
    a.I("v_xor_b32 v6, v6, v4")
    a.I("v_lshlrev_b32 v6, 4, v6")
    a.I("v_add_u32 v%d, v5, v6" % V_VD)
    a.I("s_mov_b32 s30, 0")
    a.I("s_mov_b32 s31, 0")

    def dmaK(slot):
        a.I("s_add_u32 m0, s34, %d" % (slot * 16384))
        a.I("s_nop 0")
        for n in range(4):
            a.I("buffer_load_dwordx4 v%d, s[12:15], s30 offen offset:%d lds" % (V_KD + n, n * 1024))
        a.I("s_add_u32 s30, s30, 16384")

    def dmaV(slot):
        a.I("s_add_u32 m0, s34, %d" % (65536 + slot * 16384))
        a.I("s_nop 0")
        for n in range(4):
            a.I("buffer_load_dwordx4 v%d, s[16:19], s31 offen offset:%d lds" % (V_VD, n * 1024))
        a.I("s_add_u32 s31, s31, 16384")

    dmaK(0)
    a.I("v_and_b32 v3, 31, v1")
    a.I("v_lshrrev_b32 v4, 5, v1")
    a.I("s_lshl_b32 s39, s36, 8")
    a.I("s_lshl_b32 s40, s37, 6")
    a.I("s_add_u32 s39, s39, s40")
    a.I("v_add_u32 v5, s39, v3")
    a.I("v_lshlrev_b32 v5, 13, v5")
    a.I("s_lshl_b32 s40, s35, 8")
    a.I("v_lshlrev_b32 v6, 4, v4")
    a.I("v_add3_u32 v7, v5, v6, s40")
    a.I("s_mov_b32 s41, 0")
    a.I("s_mov_b32 s42, 262144")
    for qb in range(2):
        for ks in range(8):
            q = A_Q + (qb * 8 + ks) * 4
            a.I("buffer_load_dwordx4 a[%d:%d], v7, s[20:23], s%d offen offset:%d" % (q, q + 3, 41 + qb, ks * 32))
    a.I("v_mov_b32 v%d, v7" % (V_T + 21))
    dmaV(0); dmaK(1); dmaV(1); dmaK(2); dmaV(2); dmaK(3)
    a.I("v_and_b32 v5, 15, v1")
    a.I("v_lshlrev_b32 v6, 8, v3")
    for ks in range(8):
        a.I("v_add_u32 v8, %d, v4" % (2 * ks)) if ks else a.I("v_mov_b32 v%d, v4" % (V_T))
        src = "v8" if ks else "v%d" % V_T
        a.I("v_xor_b32 v%d, %s, v5" % (V_T + 1, src))
        a.I("v_lshlrev_b32 v%d, 4, v%d" % (V_T + 1, V_T + 1))
        a.I("v_add_u32 v%d, v6, v%d" % (V_T + 2 + ks, V_T + 1))
    for ks in range(8):
        a.I("v_mov_b32 v%d, v%d" % (V_KA + ks, V_T + 2 + ks))
    a.I("v_lshrrev_b32 v6, 2, v5")
    a.I("v_and_b32 v3, 3, v5")
    a.I("v_lshlrev_b32 v3, 3, v3")
    a.I("v_lshrrev_b32 v5, 4, v1")
    a.I("v_and_b32 v5, 1, v5")
    a.I("v_lshlrev_b32 v5, 5, v5")
    a.I("v_add_u32 v3, v3, v5")
    a.I("v_lshlrev_b32 v5, 2, v4")
    a.I("v_add_u32 v5, v5, v6")
    a.I("v_lshlrev_b32 v5, 8, v5")
    a.I("v_add_u32 v3, v3, v5")
    a.I("v_add_u32 v3, 0x10000, v3")
    for db in range(4):
        a.I("v_xor_b32 v5, %d, v6" % db)
        a.I("v_lshlrev_b32 v5, 6, v5")
        a.I("v_add_u32 v%d, v3, v5" % (V_VA + db))
    for i in range(128):
        a.I("v_accvgpr_write_b32 a%d, 0" % i)
    a.I("v_mov_b32 v%d, 0" % V_L)
    a.I("v_mov_b32 v%d, 0" % (V_L + 1))
    a.I("s_waitcnt vmcnt(24)")
    a.I("s_barrier")
    for f in range(LEAD):
        for r in A.k_reads(0, f):
            A.emit_ds(r)
    A.phase(A.qk_mfmas(0), lambda f: A.k_reads(0, f), None, [], {})
    a.I("s_waitcnt vmcnt(16)")
    a.I("s_barrier")
    dmaK(0)
    a.I("s_nop 7")
    stream0 = A.max_stream(0)
    for x in stream0:
        A.emit(x)
    for qb in range(2):
        a.I("v_mov_b32 v%d, v%d" % (V_M + qb, V_MX + qb))
        a.I("v_mul_f32 v%d, s28, v%d" % (V_MC + qb, V_MX + qb))
    FR = 0.44
    full = A.max_stream(1) + ["x"] * 5 + A.exp_stream(1)
    mcost = sum(cost(x) for x in A.max_stream(1)) + 20
    ex = A.exp_stream(0)
    tot = mcost + sum(cost(x) for x in ex)
    accu = mcost
    nB = 0
    while accu < tot * FR:
        accu += cost(ex[nB])
        nB += 1
    for x in ex[:nB]:
        A.emit(x)
    for f in range(LEAD):
        for r in A.k_reads(1, f):
            A.emit_ds(r)

    def iteration(t, last=False, no_next_k=False):
        exA = A.exp_stream(t)[nB:]
        if not last:
            A.phase(A.qk_mfmas(t + 1), lambda f: A.k_reads(t + 1, f), lambda f: A.v_reads(t, f), exA, {})
        else:
            A.phase([], None, lambda f: A.v_reads(t, f), exA, {})
        if not last:
            valu = A.max_stream(t + 1) + A.check_stream() + A.exp_stream(t + 1)[:nB]
            fixed = {BAR_GAP: [["s_waitcnt vmcnt(8)", "s_barrier"]]}
            for i, g in enumerate(A.dma_stream(t)):
                fixed.setdefault(BAR_GAP + 1 + i, []).append(g)
            nxt = None if no_next_k else (lambda f: A.k_reads(t + 2, f))
            A.phase(A.pv_mfmas(t), lambda f: A.v_reads(t, f), nxt, valu, fixed)
            lab = a.newlabel("rs_stub")
            ret = a.newlabel("rs_ret")
            A.stubs.append((lab, ret, "O"))
            a.I("s_cmp_lg_u32 s33, 0")
            a.I("s_cbranch_scc1 %s" % lab)
            a.L(ret)
        else:
            A.phase(A.pv_mfmas(t), lambda f: A.v_reads(t, f), None, [], {})

    a.I("s_mov_b32 s32, 7")
    loop = a.newlabel("at_loop")
    pend0 = list(A.pending)
    a.L(loop)
    for t in range(4):
        iteration(t)
    assert A.pending == pend0, (A.pending, pend0)
    a.I("s_sub_u32 s32, s32, 1")
    a.I("s_cmp_lg_u32 s32, 0")
    a.I("s_cbranch_scc1 %s" % loop)
    iteration(28)
    iteration(29)
    iteration(30, no_next_k=True)
    iteration(31, last=True)
    a.I("s_nop 15")
    for qb in range(2):
        a.I("v_mov_b32 v%d, v%d" % (V_MX + qb, V_L + qb))
    a.I("s_nop 1")
    for qb in range(2):
        a.I("v_permlane32_swap_b32 v%d, v%d" % (V_L + qb, V_MX + qb))
    for qb in range(2):
        a.I("v_add_f32 v%d, v%d, v%d" % (V_L + qb, V_L + qb, V_MX + qb))
    for qb in range(2):
        a.I("v_rcp_f32 v%d, v%d" % (V_L + qb, V_L + qb))
    a.I("s_nop 0")
    vo = V_T + 21
    k = 0
    for qb in range(2):
        for db in range(4):
            o = A_O + (qb * 4 + db) * 16
            b = 64 + (k % 2) * 32
            k += 1
            for r in range(16):
                a.I("v_accvgpr_read_b32 v%d, a%d" % (b + r, o + r))
            for r in range(16):
                a.I("v_mul_f32 v%d, v%d, v%d" % (b + r, b + r, V_L + qb))
            for r in range(8):
                a.I("v_cvt_pk_bf16_f32 v%d, v%d, v%d" % (b + 16 + r, b + 2 * r, b + 2 * r + 1))
            a.I("s_nop 1")
            for jj in range(2):
                g = b + 16 + 4 * jj
                a.I("v_permlane32_swap_b32 v%d, v%d" % (g, g + 2))
                a.I("v_permlane32_swap_b32 v%d, v%d" % (g + 1, g + 3))
            for jj in range(2):
                g = b + 16 + 4 * jj
                a.I("buffer_store_dwordx4 v[%d:%d], v%d, s[24:27], s%d offen offset:%d" % (g, g + 3, vo, 41 + qb, db * 64 + jj * 32))
    a.L(end)
    a.I("s_endpgm")
    rmax = a.newlabel("rare_max")
    rres = a.newlabel("rare_rescale")
    for st in A.stubs:
        a.L(st[0])
        a.I("s_call_b64 s[44:45], %s" % (rres if len(st) == 3 else rmax))
        a.I("s_branch %s" % st[1])
    a.L(rmax)
    for qb in range(2):
        a.I("v_max_f32 v%d, v%d, v%d" % (V_MX + 2 + qb, V_M + qb, V_MX + qb))
        a.I("v_sub_f32 v%d, v%d, v%d" % (V_AL + qb, V_M + qb, V_MX + 2 + qb))
        a.I("v_mul_f32 v%d, s28, v%d" % (V_AL + qb, V_AL + qb))
        a.I("v_exp_f32 v%d, v%d" % (V_AL + qb, V_AL + qb))
        a.I("v_mov_b32 v%d, v%d" % (V_M + qb, V_MX + 2 + qb))
        a.I("v_mul_f32 v%d, s28, v%d" % (V_MC + qb, V_MX + 2 + qb))
        a.I("v_mul_f32 v%d, v%d, v%d" % (V_L + qb, V_L + qb, V_AL + qb))
    a.I("s_mov_b32 s33, 1")
    a.I("s_setpc_b64 s[44:45]")
    a.L(rres)
    a.I("s_nop 15")
    for qb in range(2):
        for i in range(0, 64, 8):
            for j in range(8):
                a.I("v_accvgpr_read_b32 v%d, a%d" % (V_T + j, qb * 64 + i + j))
            for j in range(8):
                a.I("v_mul_f32 v%d, v%d, v%d" % (V_T + j, V_T + j, V_AL + qb))
            for j in range(8):
                a.I("v_accvgpr_write_b32 a%d, v%d" % (qb * 64 + i + j, V_T + j))
    a.I("s_mov_b32 s33, 0")
    a.I("s_nop 1")
    a.I("s_setpc_b64 s[44:45]")
    return kernel_desc(name, 512, 48, 256), 131072
```

```python
KA_X, KA_K, KA_V, KA_WQ, KA_WO, KA_BX, KA_W1, KA_W2, KA_C, KA_WMOD, KA_OUT, KA_DBG, KA_WS = [8 * i for i in range(13)]

WS_MOD = 0x0
WS_H1 = 0x10000
WS_X1 = 0x250000
WS_H2 = 0x490000
WS_Q = 0x800000
WS_O = 0x1800000
WS_G = 0x2800000
WS_P1 = 0x4000000
WS_P2 = 0x5400000
ROWB = 1152
ACT_BYTES = 2048 * 576 * 2
PART_BYTES = 2048 * 576 * 4
NSPLIT = 4


class Asm:
    def __init__(self):
        self.lines = []
        self.uid = 0

    def I(self, s):
        self.lines.append("  " + s)

    def L(self, s):
        self.lines.append(s + ":")

    def C(self, s):
        self.lines.append("  ; " + s)

    def raw(self, s):
        self.lines.append(s)

    def newlabel(self, p):
        self.uid += 1
        return "%s_%d" % (p, self.uid)

    def text(self):
        return "\n".join(self.lines) + "\n"


def kernel_begin(a, name):
    a.raw(".text")
    a.raw(".globl %s" % name)
    a.raw(".p2align 8")
    a.raw(".type %s,@function" % name)
    a.L(name)


def kernel_desc(name, nvgpr, nsgpr, accum_offset):
    return """.section .rodata,"a"
.p2align 6
.amdhsa_kernel {name}
  .amdhsa_next_free_vgpr {nv}
  .amdhsa_next_free_sgpr {ns}
  .amdhsa_accum_offset {ao}
  .amdhsa_group_segment_fixed_size 0
  .amdhsa_kernarg_size 104
  .amdhsa_user_sgpr_count 2
  .amdhsa_user_sgpr_kernarg_segment_ptr 1
  .amdhsa_system_sgpr_workgroup_id_x 1
  .amdhsa_float_denorm_mode_32 3
  .amdhsa_float_denorm_mode_16_64 3
.end_amdhsa_kernel
""".format(name=name, nv=nvgpr, ns=nsgpr, ao=accum_offset)


def srd(a, d, base, off, nbytes):
    if off:
        a.I("s_add_u32 s%d, s%d, 0x%x" % (d, base, off))
        a.I("s_addc_u32 s%d, s%d, 0" % (d + 1, base + 1))
    else:
        a.I("s_mov_b32 s%d, s%d" % (d, base))
        a.I("s_mov_b32 s%d, s%d" % (d + 1, base + 1))
    a.I("s_mov_b32 s%d, 0x%x" % (d + 2, nbytes))
    a.I("s_mov_b32 s%d, 0x00020000" % (d + 3))


def srd_s(a, d, base, soff, nbytes):
    a.I("s_add_u32 s%d, s%d, s%d" % (d, base, soff))
    a.I("s_addc_u32 s%d, s%d, 0" % (d + 1, base + 1))
    a.I("s_mov_b32 s%d, 0x%x" % (d + 2, nbytes))
    a.I("s_mov_b32 s%d, 0x00020000" % (d + 3))


def round_pair(a, va, vb, vt):
    a.I("v_cvt_pk_bf16_f32 v%d, v%d, v%d" % (vt, va, vb))
    a.I("v_lshlrev_b32 v%d, 16, v%d" % (va, vt))
    a.I("v_and_b32 v%d, 0xffff0000, v%d" % (vb, vt))


def unpack_pair(a, vs, va, vb):
    a.I("v_lshlrev_b32 v%d, 16, v%d" % (va, vs))
    a.I("v_and_b32 v%d, 0xffff0000, v%d" % (vb, vs))
```

```python
from common import *

LOG2E = 0x3fb8aa3b


def gen_gemm(a, name, *, N, K, KC, BN, P, x_ws, w_ka, epi, dst_ws, typeB):
    NT = BN // 16
    CPR = P // 16
    VC = BN // 8
    NPW = CPR // 4
    SZ = 16384 + 64 * P
    nst = KC // 64
    ldx = K * 2
    ldw = N * 2
    ND = 4 + NPW
    kernel_begin(a, name)
    end = a.newlabel("g_end")
    a.I("s_cmp_ge_u32 s2, 256")
    a.I("s_cbranch_scc1 %s" % end)
    a.I("s_load_dwordx2 s[4:5], s[0:1], %d" % KA_WS)
    a.I("s_load_dwordx2 s[6:7], s[0:1], %d" % w_ka)
    a.I("v_and_b32 v1, 63, v0")
    a.I("v_lshrrev_b32 v2, 6, v0")
    a.I("s_and_b32 s33, s2, 7")
    a.I("s_lshr_b32 s34, s2, 3")
    if not typeB:
        a.I("s_and_b32 s25, s34, 1")
        a.I("s_lshl_b32 s35, s33, 1")
        a.I("s_add_u32 s25, s25, s35")
        a.I("s_mul_i32 s25, s25, %d" % BN)
        a.I("s_lshr_b32 s24, s34, 1")
        a.I("s_lshl_b32 s24, s24, 7")
        a.I("s_mov_b32 s26, 0")
    else:
        a.I("s_lshr_b32 s26, s33, 1")
        a.I("s_and_b32 s35, s33, 1")
        a.I("s_lshl_b32 s35, s35, 3")
        a.I("s_lshr_b32 s24, s34, 2")
        a.I("s_add_u32 s24, s24, s35")
        a.I("s_lshl_b32 s24, s24, 7")
        a.I("s_and_b32 s25, s34, 3")
        a.I("s_mul_i32 s25, s25, %d" % BN)
    a.I("v_readfirstlane_b32 s27, v2")
    a.I("s_waitcnt lgkmcnt(0)")
    srd(a, 12, 4, x_ws, 2048 * ldx)
    srd(a, 16, 6, 0, K * ldw)
    if epi == 'part':
        srd(a, 20, 4, dst_ws, PART_BYTES * NSPLIT)
    else:
        srd(a, 20, 4, dst_ws, 2048 * N * 2)
    a.I("s_mul_i32 s28, s26, %d" % (KC * 2))
    a.I("s_mul_i32 s29, s26, %d" % (KC * ldw))
    a.I("v_lshrrev_b32 v3, 3, v1")
    a.I("v_lshrrev_b32 v4, 4, v1")
    a.I("v_and_b32 v5, 7, v1")
    a.I("s_lshl_b32 s35, s27, 5")
    a.I("s_add_u32 s35, s35, s24")
    a.I("s_mov_b32 s36, %d" % ldx)
    for n in range(4):
        a.I("v_add_u32 v6, %d, v4" % (4 * n))
        a.I("v_and_b32 v6, 7, v6")
        a.I("v_xor_b32 v6, v6, v5")
        a.I("v_lshlrev_b32 v6, 4, v6")
        a.I("v_add_u32 v7, %d, v3" % (8 * n))
        a.I("v_add_u32 v7, s35, v7")
        a.I("v_mul_lo_u32 v7, v7, s36")
        a.I("v_add_u32 v%d, v7, v6" % (8 + n))
    magic = (1 << 16) // CPR + 1
    for pos in range(64 * NPW):
        assert (pos * magic) >> 16 == pos // CPR
    a.I("s_mov_b32 s36, %d" % ldw)
    a.I("s_lshl_b32 s35, s27, 4")
    a.I("s_lshl_b32 s37, s25, 1")
    for n in range(NPW):
        a.I("v_add_u32 v3, %d, v1" % (64 * n))
        a.I("v_mul_u32_u24 v4, %d, v3" % magic)
        a.I("v_lshrrev_b32 v4, 16, v4")
        a.I("v_mul_u32_u24 v5, %d, v4" % CPR)
        a.I("v_sub_u32 v5, v3, v5")
        a.I("v_lshrrev_b32 v6, 3, v4")
        a.I("v_and_b32 v6, 1, v6")
        a.I("v_lshlrev_b32 v6, 1, v6")
        a.I("v_xor_b32 v5, v5, v6")
        a.I("v_min_u32 v5, %d, v5" % (VC - 1))
        a.I("v_lshlrev_b32 v5, 4, v5")
        a.I("v_add_u32 v4, s35, v4")
        a.I("v_mul_lo_u32 v4, v4, s36")
        a.I("v_add3_u32 v%d, v4, v5, s37" % (12 + n))
    a.I("v_and_b32 v3, 15, v1")
    a.I("v_lshrrev_b32 v4, 4, v1")
    a.I("v_lshrrev_b32 v5, 1, v3")
    a.I("s_lshl_b32 s35, s27, 5")
    a.I("v_add_u32 v6, s35, v3")
    a.I("v_lshlrev_b32 v6, 7, v6")
    for kk in range(2):
        a.I("v_add_u32 v7, %d, v4" % (4 * kk))
        a.I("v_xor_b32 v7, v7, v5")
        a.I("v_lshlrev_b32 v7, 4, v7")
        a.I("v_add_u32 v%d, v6, v7" % (22 + kk))
    a.I("v_lshrrev_b32 v5, 2, v3")
    a.I("v_and_b32 v6, 3, v3")
    a.I("v_lshlrev_b32 v7, 3, v4")
    a.I("v_add_u32 v7, v7, v5")
    a.I("v_mul_u32_u24 v7, %d, v7" % P)
    a.I("v_lshlrev_b32 v6, 3, v6")
    a.I("v_add_u32 v7, v7, v6")
    a.I("v_add_u32 v7, 16384, v7")
    a.I("v_and_b32 v4, 1, v4")
    a.I("v_lshlrev_b32 v4, 5, v4")
    a.I("v_add_u32 v24, v7, v4")
    a.I("v_sub_u32 v25, v7, v4")
    for i in range(4):
        a.I("v_mov_b32 v%d, v%d" % (26 + i, 22 + i))
    XF = [32, 40]
    WF = [48, 48 + 4 * NT]
    for i in range(8 * NT):
        a.I("v_accvgpr_write_b32 a%d, 0" % i)
    a.I("s_lshl_b32 s38, s27, 12")
    a.I("s_mul_i32 s39, s27, %d" % (16 * P))
    a.I("s_add_u32 s39, s39, 16384")
    a.I("s_mov_b32 s30, 0")
    a.I("s_mov_b32 s31, 0")
    a.I("s_mov_b32 s34, 0")

    def dma_list():
        out = []
        pre = ["s_cmp_lt_u32 s34, %d" % nst,
               "s_cselect_b32 s40, s28, 0x40000000",
               "s_cselect_b32 s41, s29, 0x40000000",
               "s_add_u32 s42, s30, s38",
               "s_add_u32 s43, s30, s39"]
        for n in range(4):
            g = ["s_add_u32 m0, s42, %d" % (n * 1024), "s_nop 0",
                 "buffer_load_dwordx4 v%d, s[12:15], s40 offen lds" % (8 + n)]
            out.append((pre if n == 0 else []) + g)
        for n in range(NPW):
            g = ["s_add_u32 m0, s43, %d" % (n * 1024), "s_nop 0",
                 "buffer_load_dwordx4 v%d, s[16:19], s41 offen lds" % (12 + n)]
            out.append(g)
        out[-1] = out[-1] + ["s_add_u32 s28, s28, 128",
                             "s_add_u32 s29, s29, %d" % (64 * ldw),
                             "s_add_u32 s34, s34, 1",
                             "s_add_u32 s30, s30, %d" % SZ,
                             "s_cmp_eq_u32 s30, %d" % (3 * SZ),
                             "s_cselect_b32 s30, 0, s30"]
        return out

    def reads(st, kk):
        out = []
        for ms in range(2):
            out.append("ds_read_b128 v[%d:%d], v%d offset:%d" % (XF[st] + 4 * ms, XF[st] + 4 * ms + 3, 26 + kk, ms * 2048))
        for nt in range(NT):
            for e2 in range(2):
                r = WF[st] + 4 * nt + 2 * e2
                off = (32 * kk + 4 * e2) * P + nt * 32
                out.append("ds_read_b64_tr_b16 v[%d:%d], v%d offset:%d" % (r, r + 1, 28 + (nt & 1), off))
        return out

    for s in range(3):
        for g in dma_list():
            for x in g:
                a.I(x)
    a.I("s_waitcnt vmcnt(%d)" % (2 * ND))
    a.I("s_barrier")
    for x in reads(0, 0):
        a.I(x)
    a.I("s_mov_b32 s32, %d" % nst)
    loop = a.newlabel("g_loop")
    a.L(loop)

    def substep(st, rd, dm):
        mf = []
        for nt in range(NT):
            for ms in range(2):
                ac = (nt * 2 + ms) * 4
                mf.append("v_mfma_f32_16x16x32_bf16 a[%d:%d], v[%d:%d], v[%d:%d], a[%d:%d]" % (
                    ac, ac + 3, WF[st] + 4 * nt, WF[st] + 4 * nt + 3, XF[st] + 4 * ms, XF[st] + 4 * ms + 3, ac, ac + 3))
        rd = list(rd)
        dm = list(dm)
        for i, m in enumerate(mf):
            a.I(m)
            if rd:
                a.I(rd.pop(0))
                if rd:
                    a.I(rd.pop(0))
            elif dm:
                for x in dm.pop(0):
                    a.I(x)
        for x in rd:
            a.I(x)
        for g in dm:
            for x in g:
                a.I(x)

    a.I("s_waitcnt lgkmcnt(0)")
    substep(0, reads(1, 1), [])
    a.I("s_waitcnt vmcnt(%d) lgkmcnt(0)" % ND)
    a.I("s_barrier")
    a.I("s_add_u32 s31, s31, %d" % SZ)
    a.I("s_cmp_eq_u32 s31, %d" % (3 * SZ))
    a.I("s_cselect_b32 s31, 0, s31")
    for i in range(4):
        a.I("v_add_u32 v%d, s31, v%d" % (26 + i, 22 + i))
    substep(1, reads(0, 0), dma_list())
    a.I("s_sub_u32 s32, s32, 1")
    a.I("s_cmp_lg_u32 s32, 0")
    a.I("s_cbranch_scc1 %s" % loop)
    a.I("s_waitcnt vmcnt(0) lgkmcnt(0)")
    a.I("s_nop 7")
    a.I("s_nop 7")
    a.I("v_and_b32 v3, 15, v1")
    a.I("v_lshrrev_b32 v4, 4, v1")
    a.I("s_lshl_b32 s35, s27, 5")
    a.I("s_add_u32 s35, s35, s24")
    a.I("v_add_u32 v3, s35, v3")
    a.I("v_lshlrev_b32 v4, 2, v4")
    a.I("v_add_u32 v4, s25, v4")
    if epi == 'part':
        a.I("s_movk_i32 s36, 2304")
        a.I("v_mul_lo_u32 v3, v3, s36")
        a.I("v_lshlrev_b32 v4, 2, v4")
        a.I("v_add_u32 v3, v3, v4")
        a.I("s_mul_i32 s36, s26, %d" % PART_BYTES)
        a.I("s_add_u32 s37, s36, %d" % (16 * 2304))
        for nt in range(NT):
            for ms in range(2):
                ac = (nt * 2 + ms) * 4
                a.I("buffer_store_dwordx4 a[%d:%d], v3, s[20:23], s%d offen offset:%d" % (ac, ac + 3, 36 + ms, nt * 64))
    else:
        ldo = N * 2
        a.I("s_mov_b32 s36, %d" % ldo)
        a.I("v_mul_lo_u32 v3, v3, s36")
        a.I("v_lshlrev_b32 v4, 1, v4")
        a.I("v_add_u32 v3, v3, v4")
        a.I("s_mov_b32 s36, 0")
        a.I("s_mov_b32 s37, %d" % (16 * ldo))
        a.I("s_mov_b32 s38, 0x%x" % (LOG2E | 0x80000000))
        t = 32
        for nt in range(NT):
            for ms in range(2):
                ac = (nt * 2 + ms) * 4
                b = t + ((nt * 2 + ms) % 8) * 12
                for r in range(4):
                    a.I("v_accvgpr_read_b32 v%d, a%d" % (b + r, ac + r))
                if epi == 'silu':
                    round_pair(a, b, b + 1, b + 8)
                    round_pair(a, b + 2, b + 3, b + 8)
                    for r in range(4):
                        a.I("v_mul_f32 v%d, s38, v%d" % (b + 4 + r, b + r))
                    for r in range(4):
                        a.I("v_exp_f32 v%d, v%d" % (b + 4 + r, b + 4 + r))
                    for r in range(4):
                        a.I("v_add_f32 v%d, 1.0, v%d" % (b + 4 + r, b + 4 + r))
                    for r in range(4):
                        a.I("v_rcp_f32 v%d, v%d" % (b + 4 + r, b + 4 + r))
                    a.I("s_nop 0")
                    for r in range(4):
                        a.I("v_mul_f32 v%d, v%d, v%d" % (b + r, b + r, b + 4 + r))
                a.I("v_cvt_pk_bf16_f32 v%d, v%d, v%d" % (b + 8, b, b + 1))
                a.I("v_cvt_pk_bf16_f32 v%d, v%d, v%d" % (b + 9, b + 2, b + 3))
                a.I("buffer_store_dwordx2 v[%d:%d], v3, s[20:23], s%d offen offset:%d" % (b + 8, b + 9, 36 + ms, nt * 32))
    a.L(end)
    a.I("s_endpgm")
    return kernel_desc(name, 256 + 8 * NT, 48, 256), 3 * SZ
```

```python
from common import *

LOG2E = 0x3fb8aa3b


def gen_mod(a, name="mod_kernel"):
    kernel_begin(a, name)
    end = a.newlabel("mod_end")
    a.I("s_cmp_ge_u32 s2, 27")
    a.I("s_cbranch_scc1 %s" % end)
    a.I("s_load_dwordx2 s[4:5], s[0:1], %d" % KA_C)
    a.I("s_load_dwordx2 s[6:7], s[0:1], %d" % KA_WMOD)
    a.I("s_load_dwordx2 s[8:9], s[0:1], %d" % KA_WS)
    a.I("v_lshrrev_b32 v1, 6, v0")
    a.I("v_and_b32 v2, 63, v0")
    a.I("s_waitcnt lgkmcnt(0)")
    srd(a, 12, 4, 0, 1152)
    srd(a, 16, 6, 0, 576 * 6912)
    srd(a, 20, 8, WS_MOD, 6912)
    a.I("v_mul_u32_u24 v3, 36, v1")
    a.I("v_add_u32 v3, v3, v2")
    a.I("v_lshlrev_b32 v3, 1, v3")
    a.I("buffer_load_ushort v4, v3, s[12:15], 0 offen")
    a.I("s_mov_b32 s24, %d" % (36 * 6912))
    a.I("v_mul_lo_u32 v5, v1, s24")
    a.I("s_lshl_b32 s25, s2, 8")
    a.I("v_lshlrev_b32 v6, 2, v2")
    a.I("v_add3_u32 v5, v5, v6, s25")
    for k in range(36):
        a.I("s_mov_b32 s26, %d" % (k * 6912))
        a.I("buffer_load_dword v%d, v5, s[16:19], s26 offen" % (10 + k))
    a.I("s_waitcnt vmcnt(36)")
    a.I("v_lshlrev_b32 v4, 16, v4")
    a.I("s_mov_b32 s27, 0x%x" % (LOG2E | 0x80000000))
    a.I("v_mul_f32 v7, s27, v4")
    a.I("v_exp_f32 v7, v7")
    a.I("s_nop 0")
    a.I("v_add_f32 v7, 1.0, v7")
    a.I("v_rcp_f32 v7, v7")
    a.I("s_nop 0")
    a.I("v_mul_f32 v7, v7, v4")
    a.I("v_cvt_pk_bf16_f32 v7, v7, v7")
    a.I("v_lshlrev_b32 v7, 16, v7")
    a.I("s_nop 1")
    for k in range(36):
        a.I("v_readlane_b32 s%d, v7, %d" % (30 + k, k))
    a.I("v_mov_b32 v8, 0")
    a.I("v_mov_b32 v9, 0")
    a.I("s_waitcnt vmcnt(0)")
    for k in range(36):
        a.I("v_lshlrev_b32 v50, 16, v%d" % (10 + k))
        a.I("v_and_b32 v51, 0xffff0000, v%d" % (10 + k))
        a.I("v_fmac_f32 v8, s%d, v50" % (30 + k))
        a.I("v_fmac_f32 v9, s%d, v51" % (30 + k))
    a.I("v_lshlrev_b32 v3, 3, v0")
    a.I("ds_write_b64 v3, v[8:9]")
    a.I("s_waitcnt lgkmcnt(0)")
    a.I("s_barrier")
    a.I("v_readfirstlane_b32 s28, v1")
    a.I("s_nop 3")
    a.I("s_cmp_lg_u32 s28, 0")
    a.I("s_cbranch_scc1 %s" % end)
    for w in range(16):
        a.I("ds_read_b64 v[%d:%d], v3 offset:%d" % (10 + 2 * w, 11 + 2 * w, w * 512))
    a.I("s_waitcnt lgkmcnt(0)")
    for w in range(1, 16):
        a.I("v_add_f32 v10, v10, v%d" % (10 + 2 * w))
        a.I("v_add_f32 v11, v11, v%d" % (11 + 2 * w))
    a.I("v_cvt_pk_bf16_f32 v10, v10, v11")
    a.I("v_add_u32 v6, s25, v6")
    a.I("buffer_store_dword v10, v6, s[20:23], 0 offen")
    a.L(end)
    a.I("s_endpgm")
    return kernel_desc(name, 64, 80, 64)


def reduce32(a, v, t):
    a.I("s_nop 1")
    a.I("v_add_f32_dpp v%d, v%d, v%d quad_perm:[1,0,3,2] row_mask:0xf bank_mask:0xf" % (v, v, v))
    a.I("s_nop 1")
    a.I("v_add_f32_dpp v%d, v%d, v%d quad_perm:[2,3,0,1] row_mask:0xf bank_mask:0xf" % (v, v, v))
    a.I("s_nop 1")
    a.I("v_add_f32_dpp v%d, v%d, v%d row_half_mirror row_mask:0xf bank_mask:0xf" % (v, v, v))
    a.I("s_nop 1")
    a.I("v_add_f32_dpp v%d, v%d, v%d row_mirror row_mask:0xf bank_mask:0xf" % (v, v, v))
    a.I("ds_swizzle_b32 v%d, v%d offset:0x401F" % (t, v))
    a.I("s_waitcnt lgkmcnt(0)")
    a.I("v_add_f32 v%d, v%d, v%d" % (v, v, t))


def gen_ln(a, mode, name):
    kernel_begin(a, name)
    end = a.newlabel("ln_end")
    a.I("s_cmp_ge_u32 s2, 256")
    a.I("s_cbranch_scc1 %s" % end)
    a.I("s_load_dwordx2 s[4:5], s[0:1], %d" % KA_X)
    a.I("s_load_dwordx2 s[6:7], s[0:1], %d" % KA_WS)
    a.I("s_load_dwordx2 s[8:9], s[0:1], %d" % KA_OUT)
    a.I("v_lshrrev_b32 v1, 5, v0")
    a.I("s_lshl_b32 s3, s2, 3")
    a.I("v_add_u32 v1, s3, v1")
    a.I("v_and_b32 v2, 31, v0")
    a.I("v_lshlrev_b32 v2, 2, v2")
    a.I("s_movk_i32 s10, 1152")
    a.I("v_mul_lo_u32 v3, v1, s10")
    a.I("v_add_u32 v3, v3, v2")
    a.I("v_lshlrev_b32 v4, 1, v3")
    a.I("s_waitcnt lgkmcnt(0)")
    srd(a, 12, 6, WS_MOD, 6912)
    if mode == 'fin':
        srd(a, 16, 6, WS_X1, ACT_BYTES)
    else:
        srd(a, 16, 4, 0, ACT_BYTES)
    if mode == 'ln1':
        srd(a, 20, 6, WS_H1, ACT_BYTES)
    elif mode == 'ln2':
        srd(a, 20, 6, WS_H2, ACT_BYTES)
        srd(a, 24, 6, WS_X1, ACT_BYTES)
        srd(a, 28, 6, WS_P1, PART_BYTES * NSPLIT)
    else:
        srd(a, 20, 8, 0, ACT_BYTES)
        srd(a, 28, 6, WS_P2, PART_BYTES * NSPLIT)
    for j in range(9):
        a.I("buffer_load_dword v%d, v3, s[16:19], 0 offen offset:%d" % (10 + j, j * 128))
    rows = {'ln1': (1, 0, None), 'ln2': (4, 3, 2), 'fin': (None, None, 5)}[mode]
    crow, srow, grow = rows
    for (r, base) in ((crow, 20), (srow, 30), (grow, 40)):
        if r is None:
            continue
        a.I("s_movk_i32 s11, %d" % (r * 1152))
        for j in range(9):
            a.I("buffer_load_dword v%d, v2, s[12:15], s11 offen offset:%d" % (base + j, j * 128))
    if mode != 'ln1':
        for s in range(NSPLIT):
            a.I("s_mov_b32 s11, 0x%x" % (s * PART_BYTES))
            for j in range(9):
                r = 80 + (s * 9 + j) * 2
                a.I("buffer_load_dwordx2 v[%d:%d], v4, s[28:31], s11 offen offset:%d" % (r, r + 1, j * 256))
    a.I("s_waitcnt vmcnt(0)")
    for j in range(9):
        unpack_pair(a, 10 + j, 60 + 2 * j, 61 + 2 * j)
    if mode != 'ln1':
        for j in range(9):
            r0 = 80 + j * 2
            for s in range(1, NSPLIT):
                r = 80 + (s * 9 + j) * 2
                a.I("v_add_f32 v%d, v%d, v%d" % (r0, r0, r))
                a.I("v_add_f32 v%d, v%d, v%d" % (r0 + 1, r0 + 1, r + 1))
            round_pair(a, r0, r0 + 1, 5)
            unpack_pair(a, 40 + j, 6, 7)
            a.I("v_mul_f32 v%d, v%d, v6" % (r0, r0))
            a.I("v_mul_f32 v%d, v%d, v7" % (r0 + 1, r0 + 1))
            round_pair(a, r0, r0 + 1, 5)
            a.I("v_add_f32 v%d, v%d, v%d" % (60 + 2 * j, 60 + 2 * j, r0))
            a.I("v_add_f32 v%d, v%d, v%d" % (61 + 2 * j, 61 + 2 * j, r0 + 1))
            round_pair(a, 60 + 2 * j, 61 + 2 * j, 10 + j)
            if mode == 'ln2':
                a.I("buffer_store_dword v%d, v3, s[24:27], 0 offen offset:%d" % (10 + j, j * 128))
            else:
                a.I("buffer_store_dword v%d, v3, s[20:23], 0 offen offset:%d" % (10 + j, j * 128))
    if mode != 'fin':
        a.I("v_add_f32 v5, v60, v61")
        for i in range(2, 18):
            a.I("v_add_f32 v5, v5, v%d" % (60 + i))
        reduce32(a, 5, 6)
        a.I("s_mov_b32 s11, 0x3ae38e39")
        a.I("v_mul_f32 v5, s11, v5")
        a.I("v_mov_b32 v8, 0")
        for i in range(18):
            a.I("v_sub_f32 v6, v%d, v5" % (60 + i))
            a.I("v_fmac_f32 v8, v6, v6")
        reduce32(a, 8, 6)
        a.I("v_mul_f32 v8, s11, v8")
        round_pair(a, 5, 8, 6)
        a.I("v_add_f32 v8, 0x3727c5ac, v8")
        a.I("v_cvt_pk_bf16_f32 v6, v8, v8")
        a.I("v_lshlrev_b32 v8, 16, v6")
        a.I("v_sqrt_f32 v8, v8")
        a.I("s_nop 0")
        a.I("v_cvt_pk_bf16_f32 v6, v8, v8")
        a.I("v_lshlrev_b32 v8, 16, v6")
        a.I("v_rcp_f32 v8, v8")
        a.I("s_nop 0")
        for j in range(9):
            x0, x1 = 60 + 2 * j, 61 + 2 * j
            a.I("v_sub_f32 v%d, v%d, v5" % (x0, x0))
            a.I("v_sub_f32 v%d, v%d, v5" % (x1, x1))
            round_pair(a, x0, x1, 6)
            a.I("v_mul_f32 v%d, v%d, v8" % (x0, x0))
            a.I("v_mul_f32 v%d, v%d, v8" % (x1, x1))
            round_pair(a, x0, x1, 6)
            unpack_pair(a, 20 + j, 6, 7)
            a.I("v_add_f32 v6, 1.0, v6")
            a.I("v_add_f32 v7, 1.0, v7")
            round_pair(a, 6, 7, 9)
            a.I("v_mul_f32 v%d, v%d, v6" % (x0, x0))
            a.I("v_mul_f32 v%d, v%d, v7" % (x1, x1))
            round_pair(a, x0, x1, 9)
            unpack_pair(a, 30 + j, 6, 7)
            a.I("v_add_f32 v%d, v%d, v6" % (x0, x0))
            a.I("v_add_f32 v%d, v%d, v7" % (x1, x1))
            a.I("v_cvt_pk_bf16_f32 v%d, v%d, v%d" % (50 + j, x0, x1))
            a.I("buffer_store_dword v%d, v3, s[20:23], 0 offen offset:%d" % (50 + j, j * 128))
    a.L(end)
    a.I("s_endpgm")
    nv = 80 + NSPLIT * 18 if mode != 'ln1' else 80
    nv = (nv + 7) // 8 * 8
    return kernel_desc(name, nv, 40, nv)
```

```python
import sys
from common import *
from small import gen_mod, gen_ln
from gemm import gen_gemm
from attn import gen_attn

REF = open('adaLN_cond__mha_block_cached__dense_activation_silu__prompt.s.ref').read()
hdr = [l for l in REF.splitlines() if l.startswith(';') and '@launch' not in l and 'Override' not in l and 'grid=ceil' not in l]

def build():
    a = Asm()
    descs = []
    launches = []
    descs.append(gen_mod(a, "mod_kernel")); launches.append(("mod_kernel", 256, 1024, 8192))
    descs.append(gen_ln(a, 'ln1', "ln1_kernel")); launches.append(("ln1_kernel", 256, 256, 0))
    d, lds = gen_attn(a, "attn_kernel")
    descs.append(d); launches.append(("attn_kernel", 256, 256, lds))
    d, lds = gen_gemm(a, "oproj_kernel", N=576, K=4096, KC=1024, BN=144, P=320, x_ws=WS_O, w_ka=KA_WO, epi='part', dst_ws=WS_P1, typeB=True)
    descs.append(d); launches.append(("oproj_kernel", 256, 256, lds))
    descs.append(gen_ln(a, 'ln2', "ln2_kernel")); launches.append(("ln2_kernel", 256, 256, 0))
    d, lds = gen_gemm(a, "ffn1_kernel", N=4608, K=576, KC=576, BN=288, P=576, x_ws=WS_H2, w_ka=KA_W1, epi='silu', dst_ws=WS_G, typeB=False)
    descs.append(d); launches.append(("ffn1_kernel", 256, 256, lds))
    d, lds = gen_gemm(a, "ffn2_kernel", N=576, K=4608, KC=1152, BN=144, P=320, x_ws=WS_G, w_ka=KA_W2, epi='part', dst_ws=WS_P2, typeB=True)
    descs.append(d); launches.append(("ffn2_kernel", 256, 256, lds))
    descs.append(gen_ln(a, 'fin', "fin_kernel")); launches.append(("fin_kernel", 256, 256, 0))
    out = "\n".join(hdr) + "\n"
    for (k, g, b, l) in launches:
        out += "; @launch kernel=%s grid=(%d,1,1) block=(%d,1,1) lds=%d\n" % (k, g, b, l)
    out += '.amdgcn_target "amdgcn-amd-amdhsa--gfx950"\n'
    out += a.text()
    out += "".join(descs)
    return out

if __name__ == "__main__":
    dst = sys.argv[1] if len(sys.argv) > 1 else 'adaLN_cond__mha_block_cached__dense_activation_silu__prompt.s'
    open(dst, 'w').write(build())
    print("wrote", dst)
```

```python
from common import *
import os
STAMP = int(os.environ.get('STAMP', '0'))

C_SCALE = 0x3e0293ee
THR_RAW = 0x427af233
LEAD = 4
BAR_GAP = 17

A_O = 0
A_Q = 128
A_F = 192
V_KA = 8
V_VA = 16
V_KD = 20
V_VD = 24
V_M = 26
V_MC = 28
V_L = 30
V_AL = 32
V_MX = 34
V_T = 42
V_S = [128, 192]


def cost(ins):
    if ins.startswith("v_exp") or ins.startswith("v_rcp"):
        return 8
    if ins.startswith("buffer_load"):
        return 16
    if ins.startswith("s_"):
        return 2
    return 4


class Attn:
    def __init__(self, a):
        self.a = a
        self.pending = []
        self.stubs = []

    def S(self, buf, qb, kb):
        return V_S[buf] + (qb * 2 + kb) * 16

    def k_reads(self, tile, f):
        kb, ks = f >> 3, f & 7
        off = (tile % 4) * 16384 + kb * 8192
        return [(("K", f, 0), "ds_read_b128 a[%d:%d], v%d offset:%d" % (A_F + 4 * f, A_F + 4 * f + 3, V_KA + ks, off))]

    def v_reads(self, tile, f):
        kstep, db = f >> 2, f & 3
        out = []
        for e2 in range(2):
            off = (tile % 4) * 16384 + kstep * 4096 + e2 * 2048
            r = A_F + 4 * f + 2 * e2
            out.append((("V", f, e2), "ds_read_b64_tr_b16 a[%d:%d], v%d offset:%d" % (r, r + 1, V_VA + db, off)))
        return out

    def qk_mfmas(self, tile):
        buf = tile & 1
        out = []
        for f in range(16):
            kb, ks = f >> 3, f & 7
            for qb in range(2):
                s = self.S(buf, qb, kb)
                q = A_Q + (qb * 8 + ks) * 4
                c = "0" if ks == 0 else "v[%d:%d]" % (s, s + 15)
                out.append((("K", f, 0), "v_mfma_f32_32x32x16_bf16 v[%d:%d], a[%d:%d], a[%d:%d], %s" % (
                    s, s + 15, A_F + 4 * f, A_F + 4 * f + 3, q, q + 3, c)))
        return out

    def pv_mfmas(self, tile):
        buf = tile & 1
        out = []
        for f in range(16):
            kstep, db = f >> 2, f & 3
            for qb in range(2):
                p = self.S(buf, qb, kstep >> 1) + 8 * (kstep & 1)
                o = A_O + (qb * 4 + db) * 16
                out.append((("V", f, 1), "v_mfma_f32_32x32x16_bf16 a[%d:%d], a[%d:%d], v[%d:%d], a[%d:%d]" % (
                    o, o + 15, A_F + 4 * f, A_F + 4 * f + 3, p, p + 3, o, o + 15)))
        return out

    def max_stream(self, tile):
        buf = tile & 1
        out = []
        for kb in range(2):
            for step in range(8):
                for qb in range(2):
                    s = self.S(buf, qb, kb)
                    d = V_MX + 2 + qb * 2 + kb
                    if step == 0:
                        out.append("v_max3_f32 v%d, v%d, v%d, v%d" % (d, s, s + 1, s + 2))
                    elif step < 7:
                        out.append("v_max3_f32 v%d, v%d, v%d, v%d" % (d, d, s + 1 + 2 * step, s + 2 + 2 * step))
                    else:
                        out.append("v_max_f32 v%d, v%d, v%d" % (d, d, s + 15))
        for qb in range(2):
            out.append("v_max_f32 v%d, v%d, v%d" % (V_MX + qb, V_MX + 2 + qb * 2, V_MX + 3 + qb * 2))
        for qb in range(2):
            out.append("v_mov_b32 v%d, v%d" % (V_MX + 2 + qb, V_MX + qb))
        out.append("s_nop 1")
        for qb in range(2):
            out.append("v_permlane32_swap_b32 v%d, v%d" % (V_MX + qb, V_MX + 2 + qb))
        for qb in range(2):
            out.append("v_max_f32 v%d, v%d, v%d" % (V_MX + qb, V_MX + qb, V_MX + 2 + qb))
        return out

    def check_stream(self):
        lab = self.a.newlabel("stub")
        ret = self.a.newlabel("ret")
        self.stubs.append((lab, ret))
        return ["v_sub_f32 v%d, v%d, v%d" % (V_MX + 2, V_MX, V_M),
                "v_sub_f32 v%d, v%d, v%d" % (V_MX + 3, V_MX + 1, V_M + 1),
                "v_max_f32 v%d, v%d, v%d" % (V_MX + 2, V_MX + 2, V_MX + 3),
                "v_cmp_lt_f32 vcc, s29, v%d" % (V_MX + 2),
                "s_cbranch_vccnz %s" % lab,
                "@" + ret]

    def exp_stream(self, tile):
        buf = tile & 1
        elems = []
        for kb in range(2):
            for half in range(2):
                for qb in range(2):
                    for i in range(8):
                        elems.append((qb, self.S(buf, qb, kb) + 8 * half, i))
        out = []
        n = len(elems)
        for e in range(n + 2):
            if e < n:
                qb, b, i = elems[e]
                out.append("v_fma_f32 v%d, v%d, s28, -v%d" % (b + i, b + i, V_MC + qb))
            if 0 <= e - 1 < n:
                qb, b, i = elems[e - 1]
                out.append("v_exp_f32 v%d, v%d" % (b + i, b + i))
            if 0 <= e - 2 < n:
                qb, b, i = elems[e - 2]
                out.append("v_add_f32 v%d, v%d, v%d" % (V_L + qb, V_L + qb, b + i))
                if i & 1:
                    out.append("v_cvt_pk_bf16_f32 v%d, v%d, v%d" % (b + (i >> 1), b + i - 1, b + i))
        return out

    def dma_stream(self, t):
        out = []
        out.append(["s_add_u32 m0, s34, %d" % (((t + 5) % 4) * 16384), "s_nop 0",
                    "buffer_load_dwordx4 v%d, s[12:15], s30 offen lds" % V_KD])
        for n in range(1, 4):
            out.append(["buffer_load_dwordx4 v%d, s[12:15], s30 offen offset:%d lds" % (V_KD + n, n * 1024)])
        out.append(["s_add_u32 m0, s34, %d" % (65536 + ((t + 3) % 4) * 16384), "s_add_u32 s30, s30, 16384",
                    "buffer_load_dwordx4 v%d, s[16:19], s31 offen lds" % V_VD])
        for n in range(1, 4):
            out.append(["buffer_load_dwordx4 v%d, s[16:19], s31 offen offset:%d lds" % (V_VD, n * 1024)])
        out[-1].append("s_add_u32 s31, s31, 16384")
        return out

    def emit(self, ins):
        if ins.startswith("@"):
            self.a.L(ins[1:])
        else:
            self.a.I(ins)

    def emit_ds(self, tag_ins):
        tag, ins = tag_ins
        self.pending.append(tag)
        self.a.I(ins)

    def need(self, tag):
        if tag in self.pending:
            idx = self.pending.index(tag)
            cnt = len(self.pending) - 1 - idx
            assert cnt <= 15
            self.a.I("s_waitcnt lgkmcnt(%d)" % cnt)
            self.pending = self.pending[idx + 1:]

    def phase(self, mfmas, own_reads, next_reads, valu, fixed):
        NG = 32
        ds_at = {g: [] for g in range(NG)}
        if own_reads is not None:
            for f in range(LEAD, 16):
                rs = own_reads(f)
                for j, r in enumerate(rs):
                    ds_at[2 * (f - LEAD) + j].append(r)
        if next_reads is not None:
            for f in range(LEAD):
                rs = next_reads(f)
                for j, r in enumerate(rs):
                    ds_at[NG - 2 * LEAD + 2 * f + j].append(r)
        fixed_cost = [sum(4 for _ in ds_at[g]) + sum(cost(x) for grp in fixed.get(g, []) for x in grp) for g in range(NG)]
        total = sum(cost(x) for x in valu if not x.startswith("@")) + sum(fixed_cost)
        per = total / NG
        valu = list(valu)
        acc = 0.0
        for g in range(NG):
            if mfmas:
                tag, ins = mfmas[g]
                self.need(tag)
                self.a.I(ins)
            for r in ds_at[g]:
                self.emit_ds(r)
            for grp in fixed.get(g, []):
                for x in grp:
                    self.emit(x)
            acc += fixed_cost[g]
            target = per * (g + 1)
            while valu and (acc + cost(valu[0]) / 2 <= target or g == NG - 1 or valu[0].startswith("@")):
                x = valu.pop(0)
                if not x.startswith("@"):
                    acc += cost(x)
                self.emit(x)
        assert not valu


def split_stream(full, frac):
    tot = sum(cost(x) for x in full if not x.startswith("@"))
    acc = 0
    for i, x in enumerate(full):
        if acc >= tot * frac:
            return full[:i], full[i:]
        if not x.startswith("@"):
            acc += cost(x)
    return full, []


def gen_attn(a, name="attn_kernel"):
    kernel_begin(a, name)
    A = Attn(a)
    end = a.newlabel("at_end")
    a.I("s_cmp_ge_u32 s2, 256")
    a.I("s_cbranch_scc1 %s" % end)
    if STAMP:
        a.I("s_memtime s[50:51]")
        a.I("s_memrealtime s[58:59]")
        a.I("s_load_dwordx2 s[60:61], s[0:1], %d" % KA_DBG)
    a.I("s_load_dwordx2 s[4:5], s[0:1], %d" % KA_K)
    a.I("s_load_dwordx2 s[6:7], s[0:1], %d" % KA_V)
    a.I("s_load_dwordx2 s[8:9], s[0:1], %d" % KA_WS)
    a.I("s_load_dwordx2 s[10:11], s[0:1], %d" % KA_WQ)
    a.I("v_and_b32 v1, 63, v0")
    a.I("v_lshrrev_b32 v2, 6, v0")
    a.I("s_and_b32 s35, s2, 7")
    a.I("s_lshr_b32 s36, s2, 3")
    a.I("s_lshl_b32 s35, s35, 2")
    a.I("s_lshr_b32 s37, s36, 3")
    a.I("s_add_u32 s35, s35, s37")
    a.I("s_and_b32 s36, s36, 7")
    a.I("v_readfirstlane_b32 s37, v2")
    a.I("s_lshl_b32 s38, s35, 19")
    a.I("s_waitcnt lgkmcnt(0)")
    srd_s(a, 12, 4, 38, 524288)
    srd_s(a, 16, 6, 38, 524288)
    srd(a, 20, 8, WS_H1, ACT_BYTES)
    srd(a, 88, 10, 0, 576 * 8192)
    srd(a, 24, 8, WS_O, 2048 * 8192)
    a.I("s_mov_b32 s28, 0x%x" % C_SCALE)
    a.I("s_mov_b32 s29, 0x%x" % THR_RAW)
    a.I("s_mov_b32 s33, 0")
    a.I("s_lshl_b32 s34, s37, 12")
    a.I("v_lshrrev_b32 v3, 4, v1")
    a.I("v_and_b32 v4, 15, v1")
    a.I("s_lshl_b32 s39, s37, 4")
    a.I("v_add_u32 v5, s39, v3")
    a.I("v_lshlrev_b32 v5, 8, v5")
    for n in range(4):
        a.I("v_add_u32 v6, %d, v3" % (4 * n))
        a.I("v_xor_b32 v6, v6, v4")
        a.I("v_lshlrev_b32 v6, 4, v6")
        a.I("v_add_u32 v%d, v5, v6" % (V_KD + n))
    a.I("v_lshlrev_b32 v6, 2, v3")
    a.I("v_xor_b32 v6, v6, v4")
    a.I("v_lshlrev_b32 v6, 4, v6")
    a.I("v_add_u32 v%d, v5, v6" % V_VD)
    a.I("s_mov_b32 s30, 0")
    a.I("s_mov_b32 s31, 0")

    def dmaK(slot):
        a.I("s_add_u32 m0, s34, %d" % (slot * 16384))
        a.I("s_nop 0")
        for n in range(4):
            a.I("buffer_load_dwordx4 v%d, s[12:15], s30 offen offset:%d lds" % (V_KD + n, n * 1024))
        a.I("s_add_u32 s30, s30, 16384")

    def dmaV(slot):
        a.I("s_add_u32 m0, s34, %d" % (65536 + slot * 16384))
        a.I("s_nop 0")
        for n in range(4):
            a.I("buffer_load_dwordx4 v%d, s[16:19], s31 offen offset:%d lds" % (V_VD, n * 1024))
        a.I("s_add_u32 s31, s31, 16384")

    a.I("s_lshl_b32 s39, s36, 8")
    a.I("s_lshl_b32 s40, s37, 6")
    a.I("s_add_u32 s39, s39, s40")
    a.I("s_lshl_b32 s40, s35, 8")
    a.I("v_lshrrev_b32 v5, 3, v1")
    a.I("v_add_u32 v5, s39, v5")
    a.I("s_movk_i32 s41, 1152")
    a.I("v_mul_lo_u32 v5, v5, s41")
    a.I("v_and_b32 v7, 7, v1")
    for par in range(2):
        a.I("v_add_u32 v6, %d, v3" % (4 * par))
        a.I("v_xor_b32 v6, v6, v7")
        a.I("v_lshlrev_b32 v6, 4, v6")
        a.I("v_add_u32 v%d, v5, v6" % (88 + par))
    a.I("s_lshl_b32 s41, s37, 4")
    a.I("v_add_u32 v5, s41, v3")
    a.I("v_lshlrev_b32 v5, 13, v5")
    a.I("v_lshlrev_b32 v6, 2, v3")
    a.I("v_xor_b32 v6, v6, v4")
    a.I("v_lshlrev_b32 v6, 4, v6")
    a.I("v_add3_u32 v90, v5, v6, s40")
    a.I("s_lshl_b32 s92, s37, 13")
    a.I("s_lshl_b32 s93, s37, 12")
    a.I("s_add_u32 s93, s93, 32768")

    def g_dma(st):
        out = []
        if st < 9:
            slot = (st % 3) * 49152
            for n in range(8):
                out.append(["s_add_u32 m0, s92, %d" % (slot + n * 1024),
                            "s_mov_b32 s94, %d" % (n * 8 * 1152 + st * 128),
                            "buffer_load_dwordx4 v%d, s[20:23], s94 offen lds" % (88 + (n & 1))])
            for n in range(4):
                out.append(["s_add_u32 m0, s93, %d" % (slot + n * 1024),
                            "s_mov_b32 s94, %d" % (st * 64 * 8192 + n * 32768),
                            "buffer_load_dwordx4 v90, s[88:91], s94 offen lds"])
            return out
        tiles = [("K", 0), ("K", 1), ("K", 2)] if st == 9 else ([("K", 3), ("V", 0), ("V", 1)] if st == 10 else [])
        for (kind, slot) in tiles:
            for n in range(4):
                g = []
                if n == 0:
                    g += ["s_add_u32 m0, s34, %d" % ((0 if kind == "K" else 65536) + slot * 16384), "s_nop 0"]
                if kind == "K":
                    g.append("buffer_load_dwordx4 v%d, s[12:15], s30 offen offset:%d lds" % (V_KD + n, n * 1024))
                    if n == 3:
                        g.append("s_add_u32 s30, s30, 16384")
                else:
                    g.append("buffer_load_dwordx4 v%d, s[16:19], s31 offen offset:%d lds" % (V_VD, n * 1024))
                    if n == 3:
                        g.append("s_add_u32 s31, s31, 16384")
                out.append(g)
        return out

    for st in range(3):
        for g in (g_dma(st) if st < 2 else g_dma(st)[:3]):
            for x in g:
                a.I(x)
    a.I("v_and_b32 v3, 31, v1")
    a.I("v_lshrrev_b32 v4, 5, v1")
    a.I("v_add_u32 v5, s39, v3")
    a.I("v_lshlrev_b32 v5, 13, v5")
    a.I("v_lshlrev_b32 v6, 4, v4")
    a.I("v_add3_u32 v%d, v5, v6, s40" % (V_T + 21))
    a.I("v_and_b32 v5, 15, v1")
    a.I("v_lshlrev_b32 v6, 8, v3")
    for ks in range(8):
        a.I("v_add_u32 v8, %d, v4" % (2 * ks)) if ks else a.I("v_mov_b32 v%d, v4" % (V_T))
        src = "v8" if ks else "v%d" % V_T
        a.I("v_xor_b32 v%d, %s, v5" % (V_T + 1, src))
        a.I("v_lshlrev_b32 v%d, 4, v%d" % (V_T + 1, V_T + 1))
        a.I("v_add_u32 v%d, v6, v%d" % (V_T + 2 + ks, V_T + 1))
    for ks in range(8):
        a.I("v_mov_b32 v%d, v%d" % (V_KA + ks, V_T + 2 + ks))
    a.I("v_lshrrev_b32 v6, 2, v5")
    a.I("v_and_b32 v3, 3, v5")
    a.I("v_lshlrev_b32 v3, 3, v3")
    a.I("v_lshrrev_b32 v5, 4, v1")
    a.I("v_and_b32 v5, 1, v5")
    a.I("v_lshlrev_b32 v5, 5, v5")
    a.I("v_add_u32 v3, v3, v5")
    a.I("v_lshlrev_b32 v5, 2, v4")
    a.I("v_add_u32 v5, v5, v6")
    a.I("v_lshlrev_b32 v5, 8, v5")
    a.I("v_add_u32 v3, v3, v5")
    a.I("v_add_u32 v3, 0x10000, v3")
    for db in range(4):
        a.I("v_xor_b32 v5, %d, v6" % db)
        a.I("v_lshlrev_b32 v5, 6, v5")
        a.I("v_add_u32 v%d, v3, v5" % (V_VA + db))
    a.I("v_mov_b32 v%d, 0" % V_L)
    a.I("v_mov_b32 v%d, 0" % (V_L + 1))
    a.I("v_and_b32 v3, 31, v1")
    a.I("v_lshrrev_b32 v5, 1, v3")
    a.I("v_and_b32 v5, 7, v5")
    a.I("v_lshlrev_b32 v6, 7, v3")
    a.I("v_add_u32 v6, s92, v6")
    for ks in range(4):
        a.I("v_add_u32 v7, %d, v4" % (2 * ks))
        a.I("v_xor_b32 v7, v7, v5")
        a.I("v_lshlrev_b32 v7, 4, v7")
        a.I("v_add_u32 v%d, v6, v7" % (64 + ks))
    a.I("v_and_b32 v5, 15, v1")
    a.I("v_lshrrev_b32 v6, 2, v5")
    a.I("v_and_b32 v3, 3, v5")
    a.I("v_lshlrev_b32 v3, 3, v3")
    a.I("v_lshrrev_b32 v5, 4, v1")
    a.I("v_and_b32 v5, 1, v5")
    a.I("v_lshlrev_b32 v5, 5, v5")
    a.I("v_add_u32 v3, v3, v5")
    a.I("v_lshlrev_b32 v5, 3, v4")
    a.I("v_add_u32 v5, v5, v6")
    a.I("v_lshlrev_b32 v5, 8, v5")
    a.I("v_add_u32 v3, v3, v5")
    a.I("v_add_u32 v3, 0x8000, v3")
    for db in range(4):
        a.I("v_xor_b32 v5, %d, v6" % db)
        a.I("v_lshlrev_b32 v5, 6, v5")
        a.I("v_add_u32 v%d, v3, v5" % (68 + db))
    for sl in range(1, 3):
        for i in range(8):
            a.I("v_add_u32 v%d, %d, v%d" % (64 + sl * 8 + i, sl * 49152, 64 + i))

    def g_reads(st, ks):
        fs = A_F + (ks & 1) * 24
        base = 64 + (st % 3) * 8
        out = []
        for db in range(4):
            for e2 in range(2):
                r = fs + db * 4 + 2 * e2
                out.append("ds_read_b64_tr_b16 a[%d:%d], v%d offset:%d" % (r, r + 1, base + 4 + db, ks * 4096 + e2 * 1024))
        for qb in range(2):
            r = fs + 16 + qb * 4
            out.append("ds_read_b128 a[%d:%d], v%d offset:%d" % (r, r + 3, base + ks, qb * 4096))
        return out

    a.I("s_waitcnt vmcnt(15)")
    a.I("s_barrier")
    for x in g_reads(0, 0):
        a.I(x)
    for st in range(9):
        for ks in range(4):
            if ks == 3 and st < 8:
                a.I("s_waitcnt vmcnt(12) lgkmcnt(0)")
                a.I("s_barrier")
            else:
                a.I("s_waitcnt lgkmcnt(0)")
            if ks < 3:
                rd = g_reads(st, ks + 1)
                dm = g_dma(st + 2)[3 + 3 * ks: 6 + 3 * ks]
            else:
                rd = g_reads(st + 1, 0) if st < 8 else []
                dm = g_dma(st + 3)[:3] if st < 8 else []
            fs = A_F + (ks & 1) * 24
            i = 0
            for db in range(4):
                for qb in range(2):
                    o = (qb * 4 + db) * 16
                    c = "0" if (st == 0 and ks == 0) else "a[%d:%d]" % (o, o + 15)
                    a.I("v_mfma_f32_32x32x16_bf16 a[%d:%d], a[%d:%d], a[%d:%d], %s" % (
                        o, o + 15, fs + db * 4, fs + db * 4 + 3, fs + 16 + qb * 4, fs + 19 + qb * 4, c))
                    for _ in range(3):
                        if rd:
                            a.I(rd.pop(0))
                    if i in (2, 4, 6) and dm:
                        for x in dm.pop(0):
                            a.I(x)
                    i += 1
    a.I("s_nop 15")
    k = 0
    for qb in range(2):
        for db in range(4):
            o = (qb * 4 + db) * 16
            b = 96 + (k % 2) * 24
            k += 1
            for r in range(16):
                a.I("v_accvgpr_read_b32 v%d, a%d" % (b + r, o + r))
            for r in range(8):
                a.I("v_cvt_pk_bf16_f32 v%d, v%d, v%d" % (b + 16 + r, b + 2 * r, b + 2 * r + 1))
            a.I("s_nop 1")
            for jj in range(2):
                g = b + 16 + 4 * jj
                a.I("v_permlane32_swap_b32 v%d, v%d" % (g, g + 2))
                a.I("v_permlane32_swap_b32 v%d, v%d" % (g + 1, g + 3))
            for jj in range(2):
                for r in range(4):
                    a.I("v_accvgpr_write_b32 a%d, v%d" % (A_Q + (qb * 8 + 2 * db + jj) * 4 + r, b + 16 + 4 * jj + r))
    for i in range(128):
        a.I("v_accvgpr_write_b32 a%d, 0" % i)
    a.I("s_mov_b32 s41, 0")
    a.I("s_mov_b32 s42, 262144")
    a.I("s_waitcnt vmcnt(20)")
    a.I("s_barrier")
    if STAMP:
        a.I("s_memtime s[68:69]")
    for f in range(LEAD):
        for r in A.k_reads(0, f):
            A.emit_ds(r)
    A.phase(A.qk_mfmas(0), lambda f: A.k_reads(0, f), None, [], {})
    if STAMP:
        a.I("s_memtime s[70:71]")
    a.I("s_waitcnt vmcnt(4)")
    a.I("s_barrier")
    if STAMP:
        a.I("s_memtime s[72:73]")
    for g in A.dma_stream(-1)[:2]:
        for x in g:
            a.I(x)
    a.I("s_nop 7")
    stream0 = A.max_stream(0)
    for x in stream0:
        A.emit(x)
    for qb in range(2):
        a.I("v_mov_b32 v%d, v%d" % (V_M + qb, V_MX + qb))
        a.I("v_mul_f32 v%d, s28, v%d" % (V_MC + qb, V_MX + qb))
    FR = 0.44
    full = A.max_stream(1) + ["x"] * 5 + A.exp_stream(1)
    mcost = sum(cost(x) for x in A.max_stream(1)) + 20
    ex = A.exp_stream(0)
    tot = mcost + sum(cost(x) for x in ex)
    accu = mcost
    nB = 0
    while accu < tot * FR:
        accu += cost(ex[nB])
        nB += 1
    for x in ex[:nB]:
        A.emit(x)
    for f in range(LEAD):
        for r in A.k_reads(1, f):
            A.emit_ds(r)

    def iteration(t, last=False, no_next_k=False):
        exA = A.exp_stream(t)[nB:]
        prev = A.dma_stream(t - 1)
        if not last:
            fixedA = {3 + 8 * i: [prev[2 + i]] for i in range(4)}
            A.phase(A.qk_mfmas(t + 1), lambda f: A.k_reads(t + 1, f), lambda f: A.v_reads(t, f), exA, fixedA)
        else:
            A.phase([], None, lambda f: A.v_reads(t, f), exA, {})
        if not last:
            valu = A.max_stream(t + 1) + A.check_stream() + A.exp_stream(t + 1)[:nB]
            fixed = {BAR_GAP: [["s_waitcnt vmcnt(8)", "s_barrier"]]}
            cur = A.dma_stream(t)
            fixed[3] = [prev[6]]
            fixed[11] = [prev[7]]
            fixed[19] = [cur[0]]
            fixed[27] = [cur[1]]
            nxt = None if no_next_k else (lambda f: A.k_reads(t + 2, f))
            A.phase(A.pv_mfmas(t), lambda f: A.v_reads(t, f), nxt, valu, fixed)
            lab = a.newlabel("rs_stub")
            ret = a.newlabel("rs_ret")
            A.stubs.append((lab, ret, "O"))
            a.I("s_cmp_lg_u32 s33, 0")
            a.I("s_cbranch_scc1 %s" % lab)
            a.L(ret)
        else:
            A.phase(A.pv_mfmas(t), lambda f: A.v_reads(t, f), None, [], {})

    if STAMP:
        a.I("s_memtime s[52:53]")
    a.I("s_mov_b32 s32, 7")
    loop = a.newlabel("at_loop")
    pend0 = list(A.pending)
    a.L(loop)
    for t in range(4):
        iteration(t)
    assert A.pending == pend0, (A.pending, pend0)
    a.I("s_sub_u32 s32, s32, 1")
    a.I("s_cmp_lg_u32 s32, 0")
    a.I("s_cbranch_scc1 %s" % loop)
    if STAMP:
        a.I("s_memtime s[54:55]")
    iteration(28)
    iteration(29)
    iteration(30, no_next_k=True)
    iteration(31, last=True)
    a.I("s_nop 15")
    for qb in range(2):
        a.I("v_mov_b32 v%d, v%d" % (V_MX + qb, V_L + qb))
    a.I("s_nop 1")
    for qb in range(2):
        a.I("v_permlane32_swap_b32 v%d, v%d" % (V_L + qb, V_MX + qb))
    for qb in range(2):
        a.I("v_add_f32 v%d, v%d, v%d" % (V_L + qb, V_L + qb, V_MX + qb))
    for qb in range(2):
        a.I("v_rcp_f32 v%d, v%d" % (V_L + qb, V_L + qb))
    a.I("s_nop 0")
    vo = V_T + 21
    k = 0
    for qb in range(2):
        for db in range(4):
            o = A_O + (qb * 4 + db) * 16
            b = 64 + (k % 2) * 32
            k += 1
            for r in range(16):
                a.I("v_accvgpr_read_b32 v%d, a%d" % (b + r, o + r))
            for r in range(16):
                a.I("v_mul_f32 v%d, v%d, v%d" % (b + r, b + r, V_L + qb))
            for r in range(8):
                a.I("v_cvt_pk_bf16_f32 v%d, v%d, v%d" % (b + 16 + r, b + 2 * r, b + 2 * r + 1))
            a.I("s_nop 1")
            for jj in range(2):
                g = b + 16 + 4 * jj
                a.I("v_permlane32_swap_b32 v%d, v%d" % (g, g + 2))
                a.I("v_permlane32_swap_b32 v%d, v%d" % (g + 1, g + 3))
            for jj in range(2):
                g = b + 16 + 4 * jj
                a.I("buffer_store_dwordx4 v[%d:%d], v%d, s[24:27], s%d offen offset:%d" % (g, g + 3, vo, 41 + qb, db * 64 + jj * 32))
    if STAMP:
        a.I("s_waitcnt vmcnt(0)")
        a.I("s_memtime s[56:57]")
        a.I("s_memrealtime s[64:65]")
        a.I("s_waitcnt lgkmcnt(0)")
        a.I("s_sub_u32 s52, s52, s50")
        a.I("s_sub_u32 s54, s54, s50")
        a.I("s_sub_u32 s56, s56, s50")
        a.I("s_sub_u32 s64, s64, s58")
        a.I("s_mov_b32 s62, 256")
        a.I("s_mov_b32 s63, 0x20000")
        a.I("v_mov_b32 v4, s52")
        a.I("v_mov_b32 v5, s54")
        a.I("v_mov_b32 v6, s56")
        a.I("v_mov_b32 v7, s64")
        if STAMP == 2:
            a.I("s_sub_u32 s68, s68, s50")
            a.I("s_sub_u32 s70, s70, s50")
            a.I("s_sub_u32 s72, s72, s50")
            a.I("v_mov_b32 v5, s68")
            a.I("v_mov_b32 v6, s70")
            a.I("v_mov_b32 v7, s72")
        a.I("s_and_b32 s64, s2, 15")
        a.I("s_lshl_b32 s64, s64, 4")
        a.I("v_mov_b32 v8, s64")
        a.I("v_cmp_eq_u32 vcc, 0, v0")
        a.I("s_and_saveexec_b64 s[66:67], vcc")
        a.I("buffer_store_dwordx4 v[4:7], v8, s[60:63], 0 offen")
    a.L(end)
    a.I("s_endpgm")
    rmax = a.newlabel("rare_max")
    rres = a.newlabel("rare_rescale")
    for st in A.stubs:
        a.L(st[0])
        a.I("s_call_b64 s[44:45], %s" % (rres if len(st) == 3 else rmax))
        a.I("s_branch %s" % st[1])
    a.L(rmax)
    for qb in range(2):
        a.I("v_max_f32 v%d, v%d, v%d" % (V_MX + 2 + qb, V_M + qb, V_MX + qb))
        a.I("v_sub_f32 v%d, v%d, v%d" % (V_AL + qb, V_M + qb, V_MX + 2 + qb))
        a.I("v_mul_f32 v%d, s28, v%d" % (V_AL + qb, V_AL + qb))
        a.I("v_exp_f32 v%d, v%d" % (V_AL + qb, V_AL + qb))
        a.I("v_mov_b32 v%d, v%d" % (V_M + qb, V_MX + 2 + qb))
        a.I("v_mul_f32 v%d, s28, v%d" % (V_MC + qb, V_MX + 2 + qb))
        a.I("v_mul_f32 v%d, v%d, v%d" % (V_L + qb, V_L + qb, V_AL + qb))
    a.I("s_mov_b32 s33, 1")
    a.I("s_setpc_b64 s[44:45]")
    a.L(rres)
    a.I("s_nop 15")
    for qb in range(2):
        for i in range(0, 64, 8):
            for j in range(8):
                a.I("v_accvgpr_read_b32 v%d, a%d" % (V_T + j, qb * 64 + i + j))
            for j in range(8):
                a.I("v_mul_f32 v%d, v%d, v%d" % (V_T + j, V_T + j, V_AL + qb))
            for j in range(8):
                a.I("v_accvgpr_write_b32 a%d, v%d" % (qb * 64 + i + j, V_T + j))
    a.I("s_mov_b32 s33, 0")
    a.I("s_nop 1")
    a.I("s_setpc_b64 s[44:45]")
    return kernel_desc(name, 512, 100, 256), 147456
```

```python
from common import *

LOG2E = 0x3fb8aa3b
import os
STAMP = int(os.environ.get('STAMP', '0'))


def gen_gemm(a, name, *, N, K, KC, BN, P, x_ws, w_ka, epi, dst_ws, typeB):
    NT = BN // 16
    CPR = P // 16
    VC = BN // 8
    NPW = CPR // 4
    SZ = 16384 + 64 * P
    nst = KC // 64
    ldx = K * 2
    ldw = N * 2
    ND = 4 + NPW
    kernel_begin(a, name)
    end = a.newlabel("g_end")
    a.I("s_cmp_ge_u32 s2, 256")
    a.I("s_cbranch_scc1 %s" % end)
    if STAMP:
        a.I("s_memtime s[50:51]")
        a.I("s_load_dwordx2 s[60:61], s[0:1], %d" % KA_DBG)
    a.I("s_load_dwordx2 s[4:5], s[0:1], %d" % KA_WS)
    a.I("s_load_dwordx2 s[6:7], s[0:1], %d" % w_ka)
    a.I("v_and_b32 v1, 63, v0")
    a.I("v_lshrrev_b32 v2, 6, v0")
    a.I("s_and_b32 s33, s2, 7")
    a.I("s_lshr_b32 s34, s2, 3")
    if not typeB:
        a.I("s_and_b32 s25, s34, 1")
        a.I("s_lshl_b32 s35, s33, 1")
        a.I("s_add_u32 s25, s25, s35")
        a.I("s_mul_i32 s25, s25, %d" % BN)
        a.I("s_lshr_b32 s24, s34, 1")
        a.I("s_lshl_b32 s24, s24, 7")
        a.I("s_mov_b32 s26, 0")
    else:
        a.I("s_lshr_b32 s26, s33, 1")
        a.I("s_and_b32 s35, s33, 1")
        a.I("s_lshl_b32 s35, s35, 3")
        a.I("s_lshr_b32 s24, s34, 2")
        a.I("s_add_u32 s24, s24, s35")
        a.I("s_lshl_b32 s24, s24, 7")
        a.I("s_and_b32 s25, s34, 3")
        a.I("s_mul_i32 s25, s25, %d" % BN)
    a.I("v_readfirstlane_b32 s27, v2")
    a.I("s_waitcnt lgkmcnt(0)")
    srd(a, 12, 4, x_ws, 2048 * ldx)
    srd(a, 16, 6, 0, K * ldw)
    if epi == 'part':
        srd(a, 20, 4, dst_ws, PART_BYTES * NSPLIT)
    else:
        srd(a, 20, 4, dst_ws, 2048 * N * 2)
    a.I("s_mul_i32 s28, s26, %d" % (KC * 2))
    a.I("s_mul_i32 s29, s26, %d" % (KC * ldw))
    a.I("v_lshrrev_b32 v3, 3, v1")
    a.I("v_lshrrev_b32 v4, 4, v1")
    a.I("v_and_b32 v5, 7, v1")
    a.I("s_lshl_b32 s35, s27, 5")
    a.I("s_add_u32 s35, s35, s24")
    a.I("s_mov_b32 s36, %d" % ldx)
    for n in range(4):
        a.I("v_add_u32 v6, %d, v4" % (4 * n))
        a.I("v_and_b32 v6, 7, v6")
        a.I("v_xor_b32 v6, v6, v5")
        a.I("v_lshlrev_b32 v6, 4, v6")
        a.I("v_add_u32 v7, %d, v3" % (8 * n))
        a.I("v_add_u32 v7, s35, v7")
        a.I("v_mul_lo_u32 v7, v7, s36")
        a.I("v_add_u32 v%d, v7, v6" % (8 + n))
    magic = (1 << 16) // CPR + 1
    for pos in range(64 * NPW):
        assert (pos * magic) >> 16 == pos // CPR
    a.I("s_mov_b32 s36, %d" % ldw)
    a.I("s_lshl_b32 s35, s27, 4")
    a.I("s_lshl_b32 s37, s25, 1")
    for n in range(NPW):
        a.I("v_add_u32 v3, %d, v1" % (64 * n))
        a.I("v_mul_u32_u24 v4, %d, v3" % magic)
        a.I("v_lshrrev_b32 v4, 16, v4")
        a.I("v_mul_u32_u24 v5, %d, v4" % CPR)
        a.I("v_sub_u32 v5, v3, v5")
        a.I("v_lshrrev_b32 v6, 3, v4")
        a.I("v_and_b32 v6, 1, v6")
        a.I("v_lshlrev_b32 v6, 1, v6")
        a.I("v_xor_b32 v5, v5, v6")
        a.I("v_min_u32 v5, %d, v5" % (VC - 1))
        a.I("v_lshlrev_b32 v5, 4, v5")
        a.I("v_add_u32 v4, s35, v4")
        a.I("v_mul_lo_u32 v4, v4, s36")
        a.I("v_add3_u32 v%d, v4, v5, s37" % (12 + n))
    a.I("v_and_b32 v3, 15, v1")
    a.I("v_lshrrev_b32 v4, 4, v1")
    a.I("v_lshrrev_b32 v5, 1, v3")
    a.I("s_lshl_b32 s35, s27, 5")
    a.I("v_add_u32 v6, s35, v3")
    a.I("v_lshlrev_b32 v6, 7, v6")
    for kk in range(2):
        a.I("v_add_u32 v7, %d, v4" % (4 * kk))
        a.I("v_xor_b32 v7, v7, v5")
        a.I("v_lshlrev_b32 v7, 4, v7")
        a.I("v_add_u32 v%d, v6, v7" % (22 + kk))
    a.I("v_lshrrev_b32 v5, 2, v3")
    a.I("v_and_b32 v6, 3, v3")
    a.I("v_lshlrev_b32 v7, 3, v4")
    a.I("v_add_u32 v7, v7, v5")
    a.I("v_mul_u32_u24 v7, %d, v7" % P)
    a.I("v_lshlrev_b32 v6, 3, v6")
    a.I("v_add_u32 v7, v7, v6")
    a.I("v_add_u32 v7, 16384, v7")
    a.I("v_and_b32 v4, 1, v4")
    a.I("v_lshlrev_b32 v4, 5, v4")
    a.I("v_add_u32 v24, v7, v4")
    a.I("v_sub_u32 v25, v7, v4")
    for i in range(4):
        a.I("v_mov_b32 v%d, v%d" % (26 + i, 22 + i))
    XF = [32, 40]
    WF = [48, 48 + 4 * NT]
    for i in range(8 * NT):
        a.I("v_accvgpr_write_b32 a%d, 0" % i)
    a.I("s_lshl_b32 s38, s27, 12")
    a.I("s_mul_i32 s39, s27, %d" % (16 * P))
    a.I("s_add_u32 s39, s39, 16384")
    a.I("s_mov_b32 s30, 0")
    a.I("s_mov_b32 s31, 0")
    a.I("s_mov_b32 s34, 0")

    def dma_list():
        out = []
        pre = ["s_cmp_lt_u32 s34, %d" % nst,
               "s_cselect_b32 s40, s28, 0x40000000",
               "s_cselect_b32 s41, s29, 0x40000000",
               "s_add_u32 s42, s30, s38",
               "s_add_u32 s43, s30, s39"]
        for n in range(4):
            g = ["s_add_u32 m0, s42, %d" % (n * 1024), "s_nop 0",
                 "buffer_load_dwordx4 v%d, s[12:15], s40 offen lds" % (8 + n)]
            out.append((pre if n == 0 else []) + g)
        for n in range(NPW):
            g = ["s_add_u32 m0, s43, %d" % (n * 1024), "s_nop 0",
                 "buffer_load_dwordx4 v%d, s[16:19], s41 offen lds" % (12 + n)]
            out.append(g)
        out[-1] = out[-1] + ["s_add_u32 s28, s28, 128",
                             "s_add_u32 s29, s29, %d" % (64 * ldw),
                             "s_add_u32 s34, s34, 1",
                             "s_add_u32 s30, s30, %d" % SZ,
                             "s_cmp_eq_u32 s30, %d" % (3 * SZ),
                             "s_cselect_b32 s30, 0, s30"]
        return out

    def reads(st, kk):
        out = []
        for ms in range(2):
            out.append("ds_read_b128 v[%d:%d], v%d offset:%d" % (XF[st] + 4 * ms, XF[st] + 4 * ms + 3, 26 + kk, ms * 2048))
        for nt in range(NT):
            for e2 in range(2):
                r = WF[st] + 4 * nt + 2 * e2
                off = (32 * kk + 4 * e2) * P + nt * 32
                out.append("ds_read_b64_tr_b16 v[%d:%d], v%d offset:%d" % (r, r + 1, 28 + (nt & 1), off))
        return out

    N1 = ND // 2
    for s in range(3):
        for g in (dma_list() if s < 2 else dma_list()[:N1]):
            for x in g:
                a.I(x)
    a.I("s_waitcnt vmcnt(%d)" % (ND + N1))
    a.I("s_barrier")
    if STAMP:
        a.I("s_memtime s[52:53]")
        a.I("s_waitcnt lgkmcnt(0)")
    for x in reads(0, 0):
        a.I(x)
    a.I("s_mov_b32 s32, %d" % nst)
    loop = a.newlabel("g_loop")
    a.L(loop)

    def substep(st, rd, dm):
        mf = []
        for nt in range(NT):
            for ms in range(2):
                ac = (nt * 2 + ms) * 4
                mf.append("v_mfma_f32_16x16x32_bf16 a[%d:%d], v[%d:%d], v[%d:%d], a[%d:%d]" % (
                    ac, ac + 3, WF[st] + 4 * nt, WF[st] + 4 * nt + 3, XF[st] + 4 * ms, XF[st] + 4 * ms + 3, ac, ac + 3))
        rd = list(rd)
        dm = list(dm)
        nd = len(dm)
        slots = [int((j + 0.5) * len(mf) / nd) for j in range(nd)] if nd else []
        for i, m in enumerate(mf):
            a.I(m)
            if i in slots:
                for x in dm.pop(0):
                    a.I(x)
            elif rd:
                a.I(rd.pop(0))
                if rd:
                    a.I(rd.pop(0))
        for x in rd:
            a.I(x)
        for g in dm:
            for x in g:
                a.I(x)

    a.I("s_waitcnt lgkmcnt(0)")
    substep(0, reads(1, 1), dma_list()[N1:])
    a.I("s_waitcnt vmcnt(%d) lgkmcnt(0)" % ND)
    a.I("s_barrier")
    a.I("s_add_u32 s31, s31, %d" % SZ)
    a.I("s_cmp_eq_u32 s31, %d" % (3 * SZ))
    a.I("s_cselect_b32 s31, 0, s31")
    for i in range(4):
        a.I("v_add_u32 v%d, s31, v%d" % (26 + i, 22 + i))
    substep(1, reads(0, 0), dma_list()[:N1])
    a.I("s_sub_u32 s32, s32, 1")
    a.I("s_cmp_lg_u32 s32, 0")
    a.I("s_cbranch_scc1 %s" % loop)
    a.I("s_waitcnt vmcnt(0) lgkmcnt(0)")
    if STAMP:
        a.I("s_memtime s[54:55]")
    a.I("s_nop 7")
    a.I("s_nop 7")
    a.I("v_and_b32 v3, 15, v1")
    a.I("v_lshrrev_b32 v4, 4, v1")
    a.I("s_lshl_b32 s35, s27, 5")
    a.I("s_add_u32 s35, s35, s24")
    a.I("v_add_u32 v3, s35, v3")
    a.I("v_lshlrev_b32 v4, 2, v4")
    a.I("v_add_u32 v4, s25, v4")
    if epi == 'part':
        a.I("s_movk_i32 s36, 2304")
        a.I("v_mul_lo_u32 v3, v3, s36")
        a.I("v_lshlrev_b32 v4, 2, v4")
        a.I("v_add_u32 v3, v3, v4")
        a.I("s_mul_i32 s36, s26, %d" % PART_BYTES)
        a.I("s_add_u32 s37, s36, %d" % (16 * 2304))
        for nt in range(NT):
            for ms in range(2):
                ac = (nt * 2 + ms) * 4
                a.I("buffer_store_dwordx4 a[%d:%d], v3, s[20:23], s%d offen offset:%d" % (ac, ac + 3, 36 + ms, nt * 64))
    else:
        ldo = N * 2
        RP = BN * 2 + 16
        a.I("s_barrier")
        a.I("v_and_b32 v5, 15, v1")
        a.I("v_lshrrev_b32 v6, 4, v1")
        a.I("v_mul_u32_u24 v5, %d, v5" % RP)
        a.I("v_lshlrev_b32 v6, 3, v6")
        a.I("s_mul_i32 s36, s27, %d" % (32 * RP))
        a.I("v_add3_u32 v5, v5, v6, s36")
        a.I("s_mov_b32 s38, 0x%x" % (LOG2E | 0x80000000))
        t = 32
        for nt in range(NT):
            for ms in range(2):
                ac = (nt * 2 + ms) * 4
                b = t + ((nt * 2 + ms) % 8) * 12
                for r in range(4):
                    a.I("v_accvgpr_read_b32 v%d, a%d" % (b + r, ac + r))
                if epi == 'silu':
                    round_pair(a, b, b + 1, b + 8)
                    round_pair(a, b + 2, b + 3, b + 8)
                    for r in range(4):
                        a.I("v_mul_f32 v%d, s38, v%d" % (b + 4 + r, b + r))
                    for r in range(4):
                        a.I("v_exp_f32 v%d, v%d" % (b + 4 + r, b + 4 + r))
                    for r in range(4):
                        a.I("v_add_f32 v%d, 1.0, v%d" % (b + 4 + r, b + 4 + r))
                    for r in range(4):
                        a.I("v_rcp_f32 v%d, v%d" % (b + 4 + r, b + 4 + r))
                    a.I("s_nop 0")
                    for r in range(4):
                        a.I("v_mul_f32 v%d, v%d, v%d" % (b + r, b + r, b + 4 + r))
                a.I("v_cvt_pk_bf16_f32 v%d, v%d, v%d" % (b + 8, b, b + 1))
                a.I("v_cvt_pk_bf16_f32 v%d, v%d, v%d" % (b + 9, b + 2, b + 3))
                a.I("ds_write_b64 v5, v[%d:%d] offset:%d" % (b + 8, b + 9, ms * 16 * RP + nt * 32))
        a.I("v_lshrrev_b32 v5, 5, v1")
        a.I("v_and_b32 v6, 31, v1")
        a.I("v_lshlrev_b32 v6, 4, v6")
        a.I("v_mul_u32_u24 v7, %d, v5" % RP)
        a.I("v_add3_u32 v7, v7, v6, s36")
        a.I("v_add_u32 v5, s35, v5")
        a.I("s_mov_b32 s37, %d" % ldo)
        a.I("v_mul_lo_u32 v5, v5, s37")
        a.I("s_lshl_b32 s37, s25, 1")
        a.I("v_add3_u32 v5, v5, v6, s37")
        a.I("s_waitcnt lgkmcnt(0)")
        for i in range(16):
            a.I("ds_read_b128 v[%d:%d], v7 offset:%d" % (128 + 4 * i, 131 + 4 * i, 2 * i * RP))
        if BN == 288:
            a.I("v_lshrrev_b32 v8, 2, v1")
            a.I("v_and_b32 v9, 3, v1")
            a.I("v_lshlrev_b32 v9, 4, v9")
            a.I("v_add_u32 v9, 512, v9")
            a.I("v_mul_u32_u24 v10, %d, v8" % RP)
            a.I("v_add3_u32 v10, v10, v9, s36")
            a.I("v_add_u32 v8, s35, v8")
            a.I("s_mov_b32 s39, %d" % ldo)
            a.I("v_mul_lo_u32 v8, v8, s39")
            a.I("v_add3_u32 v8, v8, v9, s37")
            for i in range(2):
                a.I("ds_read_b128 v[%d:%d], v10 offset:%d" % (192 + 4 * i, 195 + 4 * i, 16 * i * RP))
        for i in range(16):
            a.I("s_mov_b32 s40, %d" % (2 * i * ldo))
            a.I("s_waitcnt lgkmcnt(%d)" % min(15, (15 - i) + (2 if BN == 288 else 0)))
            a.I("buffer_store_dwordx4 v[%d:%d], v5, s[20:23], s40 offen" % (128 + 4 * i, 131 + 4 * i))
        if BN == 288:
            a.I("s_waitcnt lgkmcnt(0)")
            for i in range(2):
                a.I("s_mov_b32 s40, %d" % (16 * i * ldo))
                a.I("buffer_store_dwordx4 v[%d:%d], v8, s[20:23], s40 offen" % (192 + 4 * i, 195 + 4 * i))
    if STAMP:
        a.I("s_waitcnt vmcnt(0)")
        a.I("s_memtime s[56:57]")
        a.I("s_waitcnt lgkmcnt(0)")
        a.I("s_sub_u32 s52, s52, s50")
        a.I("s_sub_u32 s54, s54, s50")
        a.I("s_sub_u32 s56, s56, s50")
        a.I("s_mov_b32 s62, 256")
        a.I("s_mov_b32 s63, 0x20000")
        a.I("v_mov_b32 v4, s52")
        a.I("v_mov_b32 v5, s54")
        a.I("v_mov_b32 v6, s56")
        a.I("v_mov_b32 v7, s2")
        a.I("s_and_b32 s64, s2, 15")
        a.I("s_lshl_b32 s64, s64, 4")
        a.I("v_mov_b32 v8, s64")
        a.I("v_cmp_eq_u32 vcc, 0, v0")
        a.I("s_and_saveexec_b64 s[66:67], vcc")
        a.I("buffer_store_dwordx4 v[4:7], v8, s[60:63], 0 offen")
    a.L(end)
    a.I("s_endpgm")
    return kernel_desc(name, 256 + 8 * NT, 70 if STAMP else 48, 256), 3 * SZ
```

```python
from common import *

LOG2E = 0x3fb8aa3b


def gen_mod(a, name="mod_kernel"):
    kernel_begin(a, name)
    end = a.newlabel("mod_end")
    pf = a.newlabel("mod_pf")
    a.I("s_cmp_ge_u32 s2, 256")
    a.I("s_cbranch_scc1 %s" % end)
    a.I("s_cmp_ge_u32 s2, 27")
    a.I("s_cbranch_scc1 %s" % pf)
    a.I("s_load_dwordx2 s[4:5], s[0:1], %d" % KA_C)
    a.I("s_load_dwordx2 s[6:7], s[0:1], %d" % KA_WMOD)
    a.I("s_load_dwordx2 s[8:9], s[0:1], %d" % KA_WS)
    a.I("v_lshrrev_b32 v1, 6, v0")
    a.I("v_and_b32 v2, 63, v0")
    a.I("s_waitcnt lgkmcnt(0)")
    srd(a, 12, 4, 0, 1152)
    srd(a, 16, 6, 0, 576 * 6912)
    srd(a, 20, 8, WS_MOD, 6912)
    a.I("v_mul_u32_u24 v3, 36, v1")
    a.I("v_add_u32 v3, v3, v2")
    a.I("v_lshlrev_b32 v3, 1, v3")
    a.I("buffer_load_ushort v4, v3, s[12:15], 0 offen")
    a.I("s_mov_b32 s24, %d" % (36 * 6912))
    a.I("v_mul_lo_u32 v5, v1, s24")
    a.I("s_lshl_b32 s25, s2, 8")
    a.I("v_lshlrev_b32 v6, 2, v2")
    a.I("v_add3_u32 v5, v5, v6, s25")
    for k in range(36):
        a.I("s_mov_b32 s26, %d" % (k * 6912))
        a.I("buffer_load_dword v%d, v5, s[16:19], s26 offen" % (10 + k))
    a.I("s_waitcnt vmcnt(36)")
    a.I("v_lshlrev_b32 v4, 16, v4")
    a.I("s_mov_b32 s27, 0x%x" % (LOG2E | 0x80000000))
    a.I("v_mul_f32 v7, s27, v4")
    a.I("v_exp_f32 v7, v7")
    a.I("s_nop 0")
    a.I("v_add_f32 v7, 1.0, v7")
    a.I("v_rcp_f32 v7, v7")
    a.I("s_nop 0")
    a.I("v_mul_f32 v7, v7, v4")
    a.I("v_cvt_pk_bf16_f32 v7, v7, v7")
    a.I("v_lshlrev_b32 v7, 16, v7")
    a.I("s_nop 1")
    for k in range(36):
        a.I("v_readlane_b32 s%d, v7, %d" % (30 + k, k))
    a.I("v_mov_b32 v8, 0")
    a.I("v_mov_b32 v9, 0")
    a.I("s_waitcnt vmcnt(0)")
    for k in range(36):
        a.I("v_lshlrev_b32 v50, 16, v%d" % (10 + k))
        a.I("v_and_b32 v51, 0xffff0000, v%d" % (10 + k))
        a.I("v_fmac_f32 v8, s%d, v50" % (30 + k))
        a.I("v_fmac_f32 v9, s%d, v51" % (30 + k))
    a.I("v_lshlrev_b32 v3, 3, v0")
    a.I("ds_write_b64 v3, v[8:9]")
    a.I("s_waitcnt lgkmcnt(0)")
    a.I("s_barrier")
    a.I("v_readfirstlane_b32 s28, v1")
    a.I("s_nop 3")
    a.I("s_cmp_lg_u32 s28, 0")
    a.I("s_cbranch_scc1 %s" % end)
    for w in range(16):
        a.I("ds_read_b64 v[%d:%d], v3 offset:%d" % (10 + 2 * w, 11 + 2 * w, w * 512))
    a.I("s_waitcnt lgkmcnt(0)")
    for w in range(1, 16):
        a.I("v_add_f32 v10, v10, v%d" % (10 + 2 * w))
        a.I("v_add_f32 v11, v11, v%d" % (11 + 2 * w))
    a.I("v_cvt_pk_bf16_f32 v10, v10, v11")
    a.I("v_add_u32 v6, s25, v6")
    a.I("buffer_store_dword v10, v6, s[20:23], 0 offen")
    a.L(end)
    a.I("s_endpgm")
    a.L(pf)
    a.I("s_load_dwordx4 s[4:7], s[0:1], %d" % KA_WQ)
    a.I("s_load_dwordx4 s[8:11], s[0:1], %d" % KA_W1)
    a.I("s_sub_u32 s3, s2, 27")
    a.I("s_lshl_b32 s3, s3, 14")
    a.I("v_lshlrev_b32 v1, 4, v0")
    a.I("v_add_u32 v1, s3, v1")
    a.I("s_mov_b32 s28, %d" % (229 * 16384))
    a.I("s_waitcnt lgkmcnt(0)")
    for i, nb in enumerate((576 * 8192, 4096 * 1152, 576 * 9216, 4608 * 1152)):
        srd(a, 12 + 4 * i, 4 + 2 * i, 0, nb)
    for i in range(4):
        a.I("buffer_load_dwordx4 v[%d:%d], v1, s[%d:%d], 0 offen" % (4 + 8 * i, 7 + 8 * i, 12 + 4 * i, 15 + 4 * i))
        a.I("buffer_load_dwordx4 v[%d:%d], v1, s[%d:%d], s28 offen" % (8 + 8 * i, 11 + 8 * i, 12 + 4 * i, 15 + 4 * i))
    a.I("s_waitcnt vmcnt(0)")
    a.I("s_endpgm")
    return kernel_desc(name, 64, 80, 64)


def reduce32(a, v, t):
    a.I("s_nop 1")
    a.I("v_add_f32_dpp v%d, v%d, v%d quad_perm:[1,0,3,2] row_mask:0xf bank_mask:0xf" % (v, v, v))
    a.I("s_nop 1")
    a.I("v_add_f32_dpp v%d, v%d, v%d quad_perm:[2,3,0,1] row_mask:0xf bank_mask:0xf" % (v, v, v))
    a.I("s_nop 1")
    a.I("v_add_f32_dpp v%d, v%d, v%d row_half_mirror row_mask:0xf bank_mask:0xf" % (v, v, v))
    a.I("s_nop 1")
    a.I("v_add_f32_dpp v%d, v%d, v%d row_mirror row_mask:0xf bank_mask:0xf" % (v, v, v))
    a.I("ds_swizzle_b32 v%d, v%d offset:0x401F" % (t, v))
    a.I("s_waitcnt lgkmcnt(0)")
    a.I("v_add_f32 v%d, v%d, v%d" % (v, v, t))


def gen_ln(a, mode, name):
    kernel_begin(a, name)
    end = a.newlabel("ln_end")
    a.I("s_cmp_ge_u32 s2, 256")
    a.I("s_cbranch_scc1 %s" % end)
    a.I("s_load_dwordx2 s[4:5], s[0:1], %d" % KA_X)
    a.I("s_load_dwordx2 s[6:7], s[0:1], %d" % KA_WS)
    a.I("s_load_dwordx2 s[8:9], s[0:1], %d" % KA_OUT)
    a.I("v_lshrrev_b32 v1, 5, v0")
    a.I("s_lshl_b32 s3, s2, 3")
    a.I("v_add_u32 v1, s3, v1")
    a.I("v_and_b32 v2, 31, v0")
    a.I("v_lshlrev_b32 v2, 2, v2")
    a.I("s_movk_i32 s10, 1152")
    a.I("v_mul_lo_u32 v3, v1, s10")
    a.I("v_add_u32 v3, v3, v2")
    a.I("v_lshlrev_b32 v4, 1, v3")
    a.I("s_waitcnt lgkmcnt(0)")
    srd(a, 12, 6, WS_MOD, 6912)
    if mode == 'fin':
        srd(a, 16, 6, WS_X1, ACT_BYTES)
    else:
        srd(a, 16, 4, 0, ACT_BYTES)
    if mode == 'ln1':
        srd(a, 20, 6, WS_H1, ACT_BYTES)
    elif mode == 'ln2':
        srd(a, 20, 6, WS_H2, ACT_BYTES)
        srd(a, 24, 6, WS_X1, ACT_BYTES)
        srd(a, 28, 6, WS_P1, PART_BYTES * NSPLIT)
    else:
        srd(a, 20, 8, 0, ACT_BYTES)
        srd(a, 28, 6, WS_P2, PART_BYTES * NSPLIT)
    for j in range(9):
        a.I("buffer_load_dword v%d, v3, s[16:19], 0 offen offset:%d" % (10 + j, j * 128))
    rows = {'ln1': (1, 0, None), 'ln2': (4, 3, 2), 'fin': (None, None, 5)}[mode]
    crow, srow, grow = rows
    for (r, base) in ((crow, 20), (srow, 30), (grow, 40)):
        if r is None:
            continue
        a.I("s_movk_i32 s11, %d" % (r * 1152))
        for j in range(9):
            a.I("buffer_load_dword v%d, v2, s[12:15], s11 offen offset:%d" % (base + j, j * 128))
    if mode != 'ln1':
        for s in range(NSPLIT):
            a.I("s_mov_b32 s11, 0x%x" % (s * PART_BYTES))
            for j in range(9):
                r = 80 + (s * 9 + j) * 2
                a.I("buffer_load_dwordx2 v[%d:%d], v4, s[28:31], s11 offen offset:%d" % (r, r + 1, j * 256))
    a.I("s_waitcnt vmcnt(0)")
    for j in range(9):
        unpack_pair(a, 10 + j, 60 + 2 * j, 61 + 2 * j)
    if mode != 'ln1':
        for j in range(9):
            r0 = 80 + j * 2
            for s in range(1, NSPLIT):
                r = 80 + (s * 9 + j) * 2
                a.I("v_add_f32 v%d, v%d, v%d" % (r0, r0, r))
                a.I("v_add_f32 v%d, v%d, v%d" % (r0 + 1, r0 + 1, r + 1))
            round_pair(a, r0, r0 + 1, 5)
            unpack_pair(a, 40 + j, 6, 7)
            a.I("v_mul_f32 v%d, v%d, v6" % (r0, r0))
            a.I("v_mul_f32 v%d, v%d, v7" % (r0 + 1, r0 + 1))
            round_pair(a, r0, r0 + 1, 5)
            a.I("v_add_f32 v%d, v%d, v%d" % (60 + 2 * j, 60 + 2 * j, r0))
            a.I("v_add_f32 v%d, v%d, v%d" % (61 + 2 * j, 61 + 2 * j, r0 + 1))
            round_pair(a, 60 + 2 * j, 61 + 2 * j, 10 + j)
            if mode == 'ln2':
                a.I("buffer_store_dword v%d, v3, s[24:27], 0 offen offset:%d" % (10 + j, j * 128))
            else:
                a.I("buffer_store_dword v%d, v3, s[20:23], 0 offen offset:%d" % (10 + j, j * 128))
    if mode != 'fin':
        a.I("v_add_f32 v5, v60, v61")
        for i in range(2, 18):
            a.I("v_add_f32 v5, v5, v%d" % (60 + i))
        reduce32(a, 5, 6)
        a.I("s_mov_b32 s11, 0x3ae38e39")
        a.I("v_mul_f32 v5, s11, v5")
        a.I("v_mov_b32 v8, 0")
        for i in range(18):
            a.I("v_sub_f32 v6, v%d, v5" % (60 + i))
            a.I("v_fmac_f32 v8, v6, v6")
        reduce32(a, 8, 6)
        a.I("v_mul_f32 v8, s11, v8")
        round_pair(a, 5, 8, 6)
        a.I("v_add_f32 v8, 0x3727c5ac, v8")
        a.I("v_cvt_pk_bf16_f32 v6, v8, v8")
        a.I("v_lshlrev_b32 v8, 16, v6")
        a.I("v_sqrt_f32 v8, v8")
        a.I("s_nop 0")
        a.I("v_cvt_pk_bf16_f32 v6, v8, v8")
        a.I("v_lshlrev_b32 v8, 16, v6")
        a.I("v_rcp_f32 v8, v8")
        a.I("s_nop 0")
        for j in range(9):
            x0, x1 = 60 + 2 * j, 61 + 2 * j
            a.I("v_sub_f32 v%d, v%d, v5" % (x0, x0))
            a.I("v_sub_f32 v%d, v%d, v5" % (x1, x1))
            round_pair(a, x0, x1, 6)
            a.I("v_mul_f32 v%d, v%d, v8" % (x0, x0))
            a.I("v_mul_f32 v%d, v%d, v8" % (x1, x1))
            round_pair(a, x0, x1, 6)
            unpack_pair(a, 20 + j, 6, 7)
            a.I("v_add_f32 v6, 1.0, v6")
            a.I("v_add_f32 v7, 1.0, v7")
            round_pair(a, 6, 7, 9)
            a.I("v_mul_f32 v%d, v%d, v6" % (x0, x0))
            a.I("v_mul_f32 v%d, v%d, v7" % (x1, x1))
            round_pair(a, x0, x1, 9)
            unpack_pair(a, 30 + j, 6, 7)
            a.I("v_add_f32 v%d, v%d, v6" % (x0, x0))
            a.I("v_add_f32 v%d, v%d, v7" % (x1, x1))
            a.I("v_cvt_pk_bf16_f32 v%d, v%d, v%d" % (50 + j, x0, x1))
            a.I("buffer_store_dword v%d, v3, s[20:23], 0 offen offset:%d" % (50 + j, j * 128))
    a.L(end)
    a.I("s_endpgm")
    nv = 80 + NSPLIT * 18 if mode != 'ln1' else 80
    nv = (nv + 7) // 8 * 8
    return kernel_desc(name, nv, 40, nv)
```
